```python
import torch

def _softmax(x, axis=-1):
    return torch.softmax(x, dim=axis)

def _gelu(x):
    return torch.nn.functional.gelu(x, approximate='tanh')

def _silu(x):
    return torch.nn.functional.silu(x)

def _sigmoid(x):
    return torch.sigmoid(x)

def _layernorm(x, axis=-1, eps=1e-05):
    m = x.mean(dim=axis, keepdim=True)
    v = x.var(dim=axis, keepdim=True, unbiased=False)
    return (x - m) / torch.sqrt(v + eps)

def _scatter_add(tgt, idx, src, axis=0):
    return tgt.clone().index_add_(axis, idx, src)

def _segment_sum(src, seg, n):
    out = torch.zeros((n,) + src.shape[1:], dtype=src.dtype)
    return out.index_add_(0, seg, src)

def _pad(x, pw):
    flat = tuple((v for pair in reversed(pw) for v in pair))
    return torch.nn.functional.pad(x, flat)
kernel_name = 'adaLN_cond__sliding_local_dilated__glu_gated_bilinear__prompt'

def setup_inputs():

    _w = lambda a: (lambda t: t.to(torch.bfloat16) if t.is_floating_point() else t)(torch.as_tensor(a))

    def _A_setup():
        B, S, D = (1, 2048, 640)
        return {'x': _w((lambda *s: torch.randn(*s, dtype=torch.bfloat16) * 0.05)(B, S, D)), 'wqkv': _w((lambda *s: torch.randn(*s, dtype=torch.bfloat16) * 0.05)(D, 3 * D)), 'wo': _w((lambda *s: torch.randn(*s, dtype=torch.bfloat16) * 0.05)(D, D))}
    _A_in = _A_setup()

    def _B_setup():
        B, S, D, F = (1, 2048, 640, 1728)
        return {'x': _w((lambda *s: torch.randn(*s, dtype=torch.bfloat16) * 0.05)(B, S, D)), 'w_gate': _w((lambda *s: torch.randn(*s, dtype=torch.bfloat16) * 0.8)(D, F) * D ** (-0.5)), 'w_up': _w((lambda *s: torch.randn(*s, dtype=torch.bfloat16) * 0.8)(D, F) * D ** (-0.5)), 'w_down': _w((lambda *s: torch.randn(*s, dtype=torch.bfloat16) * 0.8)(F, D) * F ** (-0.5))}
    _B_in = _B_setup()
    return {'A_x': _A_in['x'], 'A_wqkv': _A_in['wqkv'], 'A_wo': _A_in['wo'], 'B_x': _B_in['x'], 'B_w_gate': _B_in['w_gate'], 'B_w_up': _B_in['w_up'], 'B_w_down': _B_in['w_down'], 'c': _w((lambda *s: torch.randn(*s, dtype=torch.bfloat16) * 0.1)(1, 640) * 8.0), 'w_mod': _w((lambda *s: torch.randn(*s, dtype=torch.bfloat16) * 0.1)(640, 6 * 640) * 640 ** (-0.5) * 8.0)}

def reference(A_x, A_wqkv, A_wo, B_x, B_w_gate, B_w_up, B_w_down, c, w_mod):

    def _A_ref(x, wqkv, wo):
        B, S, D = x.shape
        H = 32
        Dh = D // H
        W, dil = (8, 2)
        qkv = (lambda x, *d: x.permute(*d))((x @ wqkv).reshape(B, S, 3, H, Dh), 2, 0, 3, 1, 4)
        q, k, v = (qkv[0], qkv[1], qkv[2])
        scale = Dh ** (-0.5)
        pos = torch.arange(S)
        off = torch.arange(W) * dil
        idx = pos[:, None] - off[None, :]
        mask = idx >= 0
        idx_c = torch.where(mask, idx, 0).reshape(-1)
        kg = k[:, :, idx_c, :].reshape(B, H, S, W, Dh)
        vg = v[:, :, idx_c, :].reshape(B, H, S, W, Dh)
        logits = torch.einsum('bhsd,bhswd->bhsw', q, kg) * scale
        logits = torch.where(mask[None, None, :, :], logits, -1000000000.0)
        attn = _softmax(logits, axis=-1)
        o = torch.einsum('bhsw,bhswd->bhsd', attn, vg)
        return (lambda x, *d: x.permute(*d))(o, 0, 2, 1, 3).reshape(B, S, D) @ wo

    def _B_ref(x, w_gate, w_up, w_down):
        g = torch.einsum('bsd,df->bsf', x, w_gate)
        u = torch.einsum('bsd,df->bsf', x, w_up)
        h = g * u
        return torch.einsum('bsf,fd->bsd', h, w_down)
    x = A_x
    mod = (_silu(c) @ w_mod).reshape(c.shape[0], 6, 1, -1)
    sa, ca, ga, sb, cb, gb = (mod[:, 0].clone(), mod[:, 1].clone(), mod[:, 2].clone(), mod[:, 3].clone(), mod[:, 4].clone(), mod[:, 5].clone())
    h = _layernorm(x, axis=-1) * (1 + ca) + sa
    x = x + ga * _A_ref(h, A_wqkv, A_wo)
    h = _layernorm(x, axis=-1) * (1 + cb) + sb
    x = x + gb * _B_ref(h, B_w_gate, B_w_up, B_w_down)
    return x
```

```python
import re

REG = re.compile(r"^-?(?:abs\()?([vas])(?:(\d+)|\[(\d+):(\d+)\])\)?$")
TRANS = ("v_exp_f32", "v_log_f32", "v_rcp_f32", "v_rsq_f32", "v_sqrt_f32", "v_sin_f32", "v_cos_f32")
NO_DST = ("s_cmp", "s_cbranch", "s_branch", "s_waitcnt", "s_barrier", "s_nop", "s_endpgm", "s_sleep", "s_setprio",
          "s_bitcmp", "buffer_store", "ds_write", "global_store")
RMW = ("v_fmac", "v_dot2c", "v_permlane", "s_addk", "s_mulk", "v_writelane")


def regs_of(tok):
    tok = tok.strip()
    if tok == "vcc":
        return [("s", 106), ("s", 107)]
    if tok == "exec":
        return [("s", 126), ("s", 127)]
    if tok == "m0":
        return [("s", 124)]
    m = REG.match(tok)
    if not m:
        return []
    f = m.group(1)
    if m.group(2) is not None:
        return [(f, int(m.group(2)))]
    return [(f, i) for i in range(int(m.group(3)), int(m.group(4)) + 1)]


class Ins:
    def __init__(self, text):
        self.text = text
        parts = text.split(None, 1)
        self.op = op = parts[0]
        rest = parts[1] if len(parts) > 1 else ""
        toks = [t.strip() for t in rest.split(",")] if rest else []
        mods = ""
        ops = []
        depth_fix = []
        for t in toks:
            depth_fix.append(t)
        for i, t in enumerate(depth_fix):
            sub = t.split()
            if not sub:
                continue
            ops.append(sub[0])
            if len(sub) > 1:
                mods += " " + " ".join(sub[1:])
        self.ops = ops
        self.mods = mods
        self.lds_dma = op.startswith("buffer_load") and " lds" in (" " + text)
        self.mfma = op.startswith("v_mfma")
        self.valu = op.startswith("v_") and not self.mfma
        self.trans = op.startswith(TRANS)
        self.smem = op.startswith(("s_load", "s_atomic", "s_memtime", "s_memrealtime", "s_buffer_load"))
        self.salu = op.startswith("s_") and not self.smem
        self.vmem = op.startswith(("buffer_", "global_"))
        self.ds = op.startswith("ds_")
        self.store = op.startswith(("buffer_store", "global_store"))
        self.dpp = any(k in text for k in ("row_", "quad_perm", "wave_"))
        self.perml = op.startswith("v_permlane")
        self.rdlane = op.startswith(("v_readfirstlane", "v_readlane"))
        r = [regs_of(o) for o in ops]
        if op.startswith(NO_DST) or self.lds_dma:
            dst, src = [], sum(r, [])
        elif op.startswith("s_atomic"):
            src = sum(r, [])
            dst = r[0] if "glc" in mods else []
        elif op.startswith(("v_add_co", "v_sub_co", "v_addc_co", "v_subb_co")):
            dst, src = r[0] + r[1], sum(r[2:], [])
        elif self.perml or op.startswith("v_swap"):
            dst = r[0] + r[1]
            src = r[0] + r[1]
        else:
            dst = r[0] if r else []
            src = sum(r[1:], [])
            if op.startswith(RMW) or self.dpp:
                src = src + dst
        if self.lds_dma:
            src = src + [("s", 124)]
        if op.endswith("saveexec_b64"):
            dst = dst + [("s", 126), ("s", 127)]
        self.dst, self.src = set(dst), set(src)
        if self.mfma:
            self.mA, self.mB = set(r[1]), set(r[2])
            self.mC = set(r[3])
            self.mD = r[0]
        if self.store:
            self.sdata = set(r[0]) if op.startswith("buffer_store") else set(r[1])
            self.wide = op.endswith(("x3", "x4"))


class State:
    def __init__(self):
        self.vm = []
        self.lg = []
        self.hist = []

    def copy(self):
        s = State()
        s.vm = [list(x) for x in self.vm]
        s.lg = [list(x) for x in self.lg]
        s.hist = list(self.hist)
        return s

    def merge(self, o):
        def mg(a, b):
            d = {}
            for x in a + b:
                k = id(x[2])
                if k in d:
                    d[k][0] = min(d[k][0], x[0])
                else:
                    d[k] = list(x)
            return list(d.values())
        self.vm = mg(self.vm, o.vm)
        self.lg = mg(self.lg, o.lg)
        self.hist = self.hist + o.hist


class Emitter:
    def __init__(self):
        self.out = []
        self.st = State()
        self.nops = 0
        self.nlabel = 0
        self.count = 0
        self.t = 0
        self.mfma_free = 0
        self.valu_free = 0
        self.lds_free = 0
        self.pipe_done = 0
        self.window = 9
        self.flight = []
        self.hook = None
        self.in_hook = False
        self.exec_full = True
        self.scc_dirty = False

    def backlog(self):
        self.flight = [x for x in self.flight if x > self.t]
        return len(self.flight)

    def _time(self, c, cost):
        wide = bool(re.search(r"0x[0-9a-f]{3,}|\b\d{3,}\b", c.text)) or len(c.ops) > 3 or c.op.startswith(("v_pk", "v_cvt_pk", "v_accvgpr"))
        done = 0
        if c.mfma:
            self.t = max(self.t, self.mfma_free)
            self.mfma_free = self.t + 16
            self.valu_free = self.t + 8
            self.t += 4
        elif c.valu:
            self.t = max(self.t, self.valu_free)
            if c.op.startswith("v_pk"):
                self.t = max(self.t, self.mfma_free)
            self.t += 8 if (c.trans or c.perml) else (5 if wide else 4)
        elif c.ds:
            w = c.op.startswith("ds_write")
            n = 4 if "128" in c.op or "2_b64" in c.op else (2 if "64" in c.op or "2_b32" in c.op else 1)
            busy = {4: 52, 2: 26, 1: 16}[n] if w else {4: 16, 2: 8, 1: 8}[n]
            self.t = max(self.t, self.lds_free - (0 if w else 64))
            self.lds_free = max(self.lds_free, self.t) + busy
            done = self.lds_free + 64
            self.t += 4
        elif c.vmem:
            busy, lat = cost or (76, 500)
            if self.backlog() >= self.window:
                self.t = self.flight[-self.window]
            self.backlog()
            start = self.flight[-7] if len(self.flight) >= 7 else self.t
            self.pipe_done = max(self.pipe_done + busy, start + lat)
            done = self.pipe_done
            self.flight.append(done)
            self.t += 4
        elif c.smem:
            done = self.t + (700 if "glc" in c.mods or c.op.startswith("s_atomic") else 300)
            self.t += 4
        elif c.op == "s_nop":
            self.t += 4 * (int(c.ops[0]) + 1)
        else:
            self.t += 4
        return done

    def raw(self, text):
        self.out.append(text)

    def comment(self, text):
        self.out.append("    ; " + text)

    def _advance(self, n, ins=None):
        self.st.hist = [(d + n, i) for d, i in self.st.hist if d + n < 24]
        if ins is not None:
            self.st.hist.append((0, ins))

    def _put(self, text, states=1, ins=None):
        self.out.append("    " + text)
        self.count += 1
        self._advance(states, ins)

    def _wait(self, vm=None, lg=None):
        parts = []
        if vm is not None:
            vm = min(vm, 63)
            parts.append(f"vmcnt({vm})")
            self.t = max([self.t] + [x[3] for x in self.st.vm if x[0] >= vm])
            self.st.vm = [x for x in self.st.vm if x[0] < vm]
        if lg is not None:
            lg = min(lg, 15)
            parts.append(f"lgkmcnt({lg})")
            self.t = max([self.t] + [x[4] for x in self.st.lg if not (x[0] < lg if not x[3] else lg > 0)])
            self.st.lg = [x for x in self.st.lg if (x[0] < lg if not x[3] else lg > 0)]
        if parts:
            self._put("s_waitcnt " + " ".join(parts))
            self.t += 4

    def _topup(self, ages):
        if ages and self.hook and not self.in_hook and self.exec_full:
            self.in_hook = True
            self.hook(min(ages))
            self.in_hook = False

    def wait_tag(self, *tags):
        self._topup([x[0] for x in self.st.vm if x[1] in tags and x[3] > self.t])
        vm = [x[0] for x in self.st.vm if x[1] in tags]
        lg = [0 if x[3] else x[0] for x in self.st.lg if x[1] in tags]
        self._wait(min(vm) if vm else None, min(lg) if lg else None)

    def wait_vm(self, n=0):
        if any(x[0] >= n for x in self.st.vm):
            self._wait(vm=n)

    def wait_lg(self):
        if self.st.lg:
            self._wait(lg=0)

    def wait_ds(self):
        if any(not x[3] for x in self.st.lg):
            self._wait(lg=0)

    def force_wait(self, vm=None, lg=None):
        self._wait(vm, lg)

    def _need(self, c):
        need = 0
        cv = {r for r in c.src if r[0] in "va"}
        cs = {r for r in c.src if r[0] == "s"}
        cd = {r for r in c.dst if r[0] in "va"}
        for d, p in self.st.hist:
            w = 0
            pv = {r for r in p.dst if r[0] in "va"}
            ps = {r for r in p.dst if r[0] == "s"}
            if p.valu:
                if c.mfma and pv & cv:
                    w = max(w, 2)
                if (c.perml or c.dpp) and pv & cv:
                    w = max(w, 2)
                if c.rdlane and pv & cv:
                    w = max(w, 1)
                if p.trans and (c.valu and not c.trans) and pv & cv:
                    w = max(w, 1)
                if ps & cs:
                    if c.valu:
                        w = max(w, 4 if c.op.startswith(("v_readlane", "v_writelane")) else 2)
                    if c.vmem:
                        w = max(w, 5)
            if p.mfma:
                D = set(p.mD)
                if c.mfma:
                    if D & (c.mA | c.mB):
                        w = max(w, 8)
                    if D & c.mC and D != c.mC:
                        w = max(w, 6)
                    if D & set(c.mD) and D != c.mC:
                        w = max(w, 6)
                else:
                    if D & (cv | cd):
                        w = max(w, 8)
                    if c.valu and p.mC & cd:
                        w = max(w, 3)
            if p.salu and ("s", 124) in p.dst and c.lds_dma:
                w = max(w, 1)
            if p.store and p.wide and p.sdata & cd:
                w = max(w, 2 if c.valu else 1)
            if w - d > need:
                need = w - d
        return need

    def __call__(self, text, tag=None, cost=None):
        if "\n" in text:
            h, self.hook = self.hook, None
            for t in text.split("\n"):
                if t.strip():
                    self(t.strip(), tag, cost)
            self.hook = h
            return
        c = Ins(text)
        if c.salu:
            if c.op.startswith(("s_cselect", "s_cbranch_scc", "s_addc", "s_subb")) and not self.in_hook:
                assert not self.scc_dirty, "SCC overwritten by a prefetch before: " + text
            if c.op.startswith(("s_add", "s_sub", "s_cmp", "s_and", "s_or", "s_xor", "s_lsh", "s_max", "s_min", "s_bitcmp", "s_bfe")):
                self.scc_dirty = self.in_hook
            if c.ops and c.ops[0] in ("exec", "exec_hi", "exec_lo"):
                self.exec_full = c.op.startswith("s_mov") and c.ops[1] == "-1"
        touched = c.src | c.dst
        self._topup([x[0] for x in self.st.vm if x[2] & touched and x[3] > self.t])
        vm = [x[0] for x in self.st.vm if x[2] & touched]
        lg = [0 if x[3] else x[0] for x in self.st.lg if x[2] & touched]
        if vm or lg:
            self._wait(min(vm) if vm else None, min(lg) if lg else None)
        need = self._need(c)
        if need > 0:
            self._put(f"s_nop {need - 1}", states=need)
            self.nops += need
            self.t += 4 * need
        states = 1
        if c.op == "s_nop":
            states = int(c.ops[0]) + 1
        self._put(text, states=states, ins=c)
        done = self._time(c, cost)
        if c.vmem:
            for x in self.st.vm:
                x[0] += 1
            self.st.vm.append([0, tag, set(c.dst), done])
        if c.ds:
            for x in self.st.lg:
                x[0] += 1
            self.st.lg.append([0, tag, set(c.dst), False, done])
        if c.smem:
            self.st.lg.append([0, tag, set(c.dst), True, done])
        if self.hook and not self.in_hook and self.exec_full and (c.mfma or c.valu or c.ds):
            self.in_hook = True
            self.hook(c)
            self.in_hook = False

    def barrier(self):
        self.wait_ds()
        self("s_barrier")

    def new_label(self, base):
        self.nlabel += 1
        return f"L_{base}_{self.nlabel}"

    def label(self, name):
        self.out.append(name + ":")

    def if_else(self, cond_branch_to_else, then_fn, else_fn=None):
        le, lj = self.new_label("else"), self.new_label("join")
        h, self.hook = self.hook, None
        self(f"{cond_branch_to_else} {le}")
        s0 = self.st.copy()
        t0 = self.clock()
        then_fn()
        if else_fn is None:
            self.label(le)
            self.st.merge(s0)
        else:
            self(f"s_branch {lj}")
            s1, t1 = self.st, self.clock()
            self.st = s0
            self.set_clock(t0)
            self.label(le)
            else_fn()
            self.label(lj)
            self.st.merge(s1)
            self.set_clock([max(a, b, key=lambda z: len(z) if isinstance(z, list) else z) for a, b in zip(t1, self.clock())])
        self.hook = h

    def clock(self):
        return [self.t, self.mfma_free, self.valu_free, self.lds_free, self.pipe_done, list(self.flight)]

    def set_clock(self, c):
        self.t, self.mfma_free, self.valu_free, self.lds_free, self.pipe_done, self.flight = c

    def text(self):
        return "\n".join(self.out) + "\n"
```

```python
import re
import sys
sys.path.insert(0, "tools")
from emit import Emitter

NAME = "adaLN_cond__sliding_local_dilated__glu_gated_bilinear__prompt"

OFF_W1P, OFF_W2P, OFF_W3P, OFF_W4P = 0, 0x260000, 0x330000, 0x770000
OFF_O, OFF_H = 0x990000, 0xE90000
OFF_H2 = OFF_O
OFF_ST, OFF_MOD, OFF_FLG = 0x1550000, 0x1590000, 0x15A0000
FL_EPOCH, FL_F1, FL_F3 = 0, 0x1000, 0x9000
FL_S1, FL_S2, FL_S3 = 0x10000, 0x30000, 0x40000
NREP = 32
OFF_LN = 0x15F0000
OFF_STAMP = 0x1600000
WS_USED = 0x1620000
OOB = 0x80000000

L_A = 0
L_JOB = 102400
L_PACK = 122880
L_W3X = 0
L_W2 = 40960
L_A3 = 40960
L_ATT = 143360
L_MV = 153600
L_MISC = 155648
L_SILU = L_MISC
L_STAT = L_MISC + 512
L_AS = L_MISC + 3072
L_RS = L_MISC + 5632
L_SP = L_MISC + 5952
LDS_BYTES = 163840

S_X, S_WS, S_A, S_B, S_OUT = 8, 12, 16, 20, 24
P_X, P_WQKV, P_WO, P_WG, P_WU, P_WD, P_C, P_WMOD, P_OUT, P_WS = 28, 30, 32, 36, 38, 40, 42, 44, 46, 50
sW, sCB, sRB, sM, sPAIR, sXCD, sN, sFAST = 52, 53, 54, 55, 56, 57, 58, 59
sJK, sJC = 60, 61
sFL = 34
sMY = 63
sPOLL = 64
STAMP0 = 72
XRES = 244
S_C = 48
sPK = 28
sPD, sSS, sSD = 36, 44, 45

LOG2E = 1.4426950408889634


def f32(x):
    import struct
    return "0x%08x" % struct.unpack("<I", struct.pack("<f", x))[0]


def srd(n):
    return f"s[{n}:{n + 3}]"


def R(q, n=4, o=0):
    f, b = q
    return f"{f}[{b + o}:{b + o + n - 1}]" if n > 1 else f"{f}{b + o}"


def v(b, n=1):
    return R(("v", b), n)


class Pool:
    def __init__(self, quads):
        self.free = list(quads)

    def alloc(self):
        return self.free.pop(0)

    def release(self, q):
        assert q not in self.free
        self.free.append(q)

    def add(self, quads):
        for q in quads:
            self.release(q)

    def take(self, quads):
        for q in quads:
            self.free.remove(q)


class Stream:
    def __init__(self, e, sreg):
        self.e, self.s, self.cur = e, sreg, 0

    def off(self, byte):
        blk = byte // 4096 * 4096
        if blk != self.cur:
            self.e(f"s_add_u32 s{self.s}, s{self.s}, {blk - self.cur}" if blk > self.cur else
                   f"s_sub_u32 s{self.s}, s{self.s}, {self.cur - blk}")
            self.cur = blk
        imm = byte - blk
        return f"s{self.s} offen" + (f" offset:{imm}" if imm else "")


class Gen:
    def __init__(self, cfg):
        self.c = cfg
        self.e = Emitter()
        self.e.window = cfg["window"]
        self.nstamp = 0
        self.stamp_names = []
        self.pool = Pool([("a", 4 * i) for i in range(61)])
        self.queue = []
        self.loc = {}
        self.xn = 0
        self.bulk = []
        self.m0 = None
        self.reserve = 0
        self.hold = 18
        self.last_pf = False
        self.gate = lambda key: True
        self.urgent = lambda key: True
        self.model = []

    def stamp(self, name):
        self.model.append((name, self.e.t))
        d = self.c.get("diag_hold")
        if d and name == "start":
            self.e("s_memrealtime s[96:97]")
        if d and d[0] == name:
            lab = self.e.new_label("hold")
            self.e.force_wait(lg=0)
            self.e.label(lab)
            self.e("s_memrealtime s[94:95]")
            self.e("s_sub_u32 s94, s94, s96")
            self.e(f"s_cmp_lt_u32 s94, {d[1] * 100}")
            self.e(f"s_cbranch_scc1 {lab}")
        if name not in (self.c.get("stamps") or ()):
            return
        r = STAMP0 + 2 * self.nstamp
        assert r + 1 <= 97
        self.e(f"{'s_memrealtime' if self.c.get('rt') else 's_memtime'} s[{r}:{r + 1}]")
        self.nstamp += 1
        self.stamp_names.append(name)

    def _issue(self, lst):
        key, needs, fn = lst.pop(0)
        q = self.pool.alloc() if needs else None
        was, self.e.in_hook = self.e.in_hook, True
        fn(q)
        self.e.in_hook = was
        self.loc[key] = q

    def pf(self, n=1):
        done = 0
        for _ in range(n):
            u = self.queue[0] if self.queue and self.gate(self.queue[0][0]) else None
            if u and u[1] and len(self.pool.free) <= self.hold:
                u = None
            b = self.bulk[0] if self.bulk and len(self.pool.free) > self.reserve else None
            if u and (not b or self.urgent(u[0])):
                self._issue(self.queue)
            elif b:
                self._issue(self.bulk)
            else:
                break
            done += 1
        return done

    def need(self, key):
        while key not in self.loc:
            assert self.queue and self.gate(self.queue[0][0]) and (self.pool.free or not self.queue[0][1]), f"cannot issue {key}"
            self._issue(self.queue)
        return self.loc[key]

    def auto(self, depth, mfma_only=False, ahead=None):
        if depth is None:
            self.e.hook = None
            return

        def hook(c):
            if isinstance(c, int):
                self.pf((ahead or depth) - c)
                return
            self.last_pf = False
            if mfma_only and not c.mfma:
                return
            if self.e.backlog() < depth:
                self.last_pf = self.pf(1) > 0
        self.e.hook = hook

    def fill(self, until):
        t0 = self.e.t
        while self.e.pipe_done < t0 + until and self.pf(1):
            pass

    def set_m0(self, sreg, off):
        if self.m0 != (sreg, off):
            self.e(f"s_add_u32 m0, s{sreg}, {off}")
            self.m0 = (sreg, off)

    def mfma(self, d, a, b, c=None):
        self.e(f"v_mfma_f32_16x16x32_bf16 {d}, {a}, {b}, {d if c is None else c}")

    def poll(self, load, check):
        e = self.e
        top, done = e.new_label("poll"), e.new_label("pdone")
        h, e.hook = e.hook, None
        e.wait_lg()
        e("s_mov_b32 s3, 0")
        e.label(top)
        e("s_add_u32 s3, s3, 1")
        e("s_cmp_gt_u32 s3, 0x20000")
        e(f"s_cbranch_scc1 {done}")
        load()
        check(top)
        e.label(done)
        e.hook = h

    def check_or_spin(self, check, load):
        e = self.e
        again, ok = e.new_label("retry"), e.new_label("ok")
        h, e.hook = e.hook, None
        check(again)
        s_fall, clk = e.st.copy(), e.clock()
        e(f"s_branch {ok}")
        e.label(again)
        self.poll(load, check)
        e.label(ok)
        e.st.merge(s_fall)
        e.set_clock(clk)
        e.hook = h

    def ws_store(self, items, tag="pub", through=False):
        e = self.e
        if through:
            for op, data, voff, rest in items:
                e(f"{op} {data}, {voff}, {srd(S_WS)}, {rest} sc1", tag=tag, cost=self.c["c_st1"])
            return
        e(f"s_cmp_eq_u32 s{sFAST}, 1")

        def variant(mod):
            def f():
                for op, data, voff, rest in items:
                    e(f"{op} {data}, {voff}, {srd(S_WS)}, {rest}{mod}", tag=tag, cost=self.c["c_st"])
            return f
        e.if_else("s_cbranch_scc0", variant(""), variant(" sc1"))

    def group_sync(self, fl_off, idx_reg, mem_reg, members, before, between, extra=None):
        e = self.e
        self.auto(None)
        self.fill(before)
        e(f"s_lshl_b32 s4, s{idx_reg}, 12")
        e(f"s_add_u32 s4, s4, {fl_off}")
        e(f"s_lshl_b32 s5, s{mem_reg}, 2")
        e("s_add_u32 s5, s5, s4")
        e(f"s_add_u32 s5, s5, {OFF_FLG}")
        e("v_lshlrev_b32 v14, 7, v0")
        e(f"v_mov_b32 v15, s{sN}")
        e(f"s_mov_b32 s6, s{sN}")
        e(f"s_mov_b32 s7, s{sN}")
        self.stamp(f"pre{fl_off:x}")
        e.wait_tag("pub")
        e.barrier()
        self.stamp(f"drained{fl_off:x}")
        e(f"s_cmp_eq_u32 s{sW}, 0")

        def signal():
            e("s_mov_b32 exec_hi, 0")
            self.ws_store([("buffer_store_dword", "v15", "v14", "s5 offen")], tag=None)
            e("s_mov_b32 exec_hi, -1")
        e.if_else("s_cbranch_scc0", signal)
        t0 = e.t
        while extra and any(k[0][0] == extra for k in self.queue):
            self._issue(self.queue)
        self.fill(between - (e.t - t0))
        self.stamp(f"filled{fl_off:x}")
        e(f"s_cmp_eq_u32 s{sW}, 0")

        def spin():
            dst = f"s[36:{36 + members - 1}]"

            def ld():
                e(f"s_cmp_lt_u32 s3, {NREP}")

                def fresh():
                    e(f"s_load_dwordx{members} {dst}, s[{sFL}:{sFL + 1}], s4")
                    e("s_add_u32 s4, s4, 128")
                e.if_else("s_cbranch_scc0", fresh, lambda: e(f"s_load_dwordx{members} {dst}, s[{sFL}:{sFL + 1}], s4 glc"))

            def ck(top):
                for k in range(0, members, 2):
                    e(f"s_cmp_lg_u64 s[{36 + k}:{37 + k}], s[6:7]")
                    e(f"s_cbranch_scc1 {top}")
            self.poll(ld, ck)
        e.if_else("s_cbranch_scc0", spin)
        self.stamp(f"polled{fl_off:x}")
        e.t = max(e.t, t0 + self.c["t_flag"])
        if extra:
            e.wait_tag(extra)
        e.barrier()

    def make_srd(self, sr, p, n):
        e = self.e
        e(f"s_mov_b32 s{sr}, s{p}")
        e(f"s_mov_b32 s{sr + 1}, s{p + 1}")
        e(f"s_mov_b32 s{sr + 2}, {n}")
        e(f"s_mov_b32 s{sr + 3}, 0x20000")

    def slab_offsets(self, sigma_off, src, dst):
        e = self.e
        e(f"s_cmp_lt_u32 s2, {sigma_off[0]}")
        e(f"s_cselect_b32 s4, {sigma_off[1]}, {sigma_off[2]}")
        e("s_sub_u32 s4, s2, s4")
        e("s_lshr_b32 s5, s4, 2")
        e("s_and_b32 s4, s4, 3")
        e(f"s_mul_i32 s6, s4, {160 * 7680}")
        e("s_lshl_b32 s7, s5, 7")
        e("s_add_u32 s6, s6, s7")
        e(f"s_mul_i32 s7, s{sW}, {8 * 7680}")
        e(f"s_add_u32 s{src}, s6, s7")
        e("s_mul_i32 s4, s4, 15360")
        e("s_lshl_b32 s5, s5, 8")
        e("s_add_u32 s4, s4, s5")
        e(f"s_lshl_b32 s5, s{sW}, 6")
        e("s_add_u32 s4, s4, s5")
        e(f"s_add_u32 s{dst}, s4, {OFF_MOD}")

    def slab_load(self, i, src, voff):
        e = self.e
        e(f"s_lshl_b32 m0, s{sW}, 10")
        e(f"s_add_u32 m0, m0, {L_JOB + 4096 * i}")
        if i:
            e(f"s_add_u32 s{src}, s{src}, {32 * 7680}")
        e(f"buffer_load_dwordx4 v{voff}, {srd(S_B)}, s{src} offen{self.c['nt']} lds", tag="job", cost=self.c["c_hbm2"])

    def slab_steps(self, dst, a, b, vst, d):
        qa = [self.pool.alloc() for _ in range(5)]
        qb = [self.pool.alloc() for _ in range(5)]
        L = []
        for k in range(5):
            L.append(f"ds_read_b64_tr_b16 {R(qa[k], 2)}, v{a} offset:{4096 * k}")
            L.append(f"ds_read_b64_tr_b16 {R(qa[k], 2, 2)}, v{a} offset:{4096 * k + 2048}")
            L.append(f"ds_read2_b64 {R(qb[k])}, v{b} offset0:{8 * k} offset1:{8 * k + 4}")
        L.append(f"v_mov_b32 v{d + 4}, 0xff")
        M = [f"v_mfma_f32_16x16x32_bf16 {v(d, 4)}, {R(qa[k])}, {R(qb[k])}, {v(d, 4) if k else 0}" for k in range(5)]
        F = [f"v_bfi_b32 v{d + r}, v{d + 4}, s{sN}, v{d + r}" for r in range(4)]
        F.append((f"buffer_store_dwordx4 {v(d, 4)}, v{vst}, {srd(S_WS)}, s{dst} offen sc1", "slabst"))
        return L, M, F, qa + qb

    def prologue(self):
        e = self.e
        c = self.c
        self.stamp("start")
        if c.get("stamps"):
            e("s_memrealtime s[98:99]")
        e("s_cmp_ge_u32 s2, 256")
        e("s_cbranch_scc1 L_end")
        e("s_load_dwordx16 s[28:43], s[0:1], 0")
        e("s_load_dwordx8 s[44:51], s[0:1], 64")
        e("v_lshrrev_b32 v2, 6, v0")
        e("v_mov_b32 v15, v0")
        e(f"v_readfirstlane_b32 s{sW}, v2")
        e("v_and_b32 v0, 63, v0")
        e("v_lshlrev_b32 v1, 4, v0")
        e(f"s_and_b32 s{sXCD}, s2, 7")
        e("s_lshr_b32 s3, s2, 3")
        e(f"s_mul_i32 s4, s{sXCD}, 20")
        e("s_add_u32 s4, s4, s3")
        e("s_sub_u32 s4, s4, 10")
        e(f"s_lshr_b32 s{sJK}, s4, 3")
        e(f"s_and_b32 s{sJC}, s4, 7")
        e(f"s_and_b32 s{sCB}, s3, 7")
        e(f"s_and_b32 s{sM}, s3, 15")
        e("s_lshr_b32 s3, s3, 3")
        e(f"s_lshl_b32 s{sRB}, s{sXCD}, 2")
        e(f"s_add_u32 s{sRB}, s{sRB}, s3")
        e(f"s_lshr_b32 s{sPAIR}, s{sRB}, 1")
        e("v_lshrrev_b32 v5, 3, v0")
        e("v_and_b32 v6, 6, v5")
        e("v_xor_b32 v6, v6, v0")
        e("v_and_b32 v6, 7, v6")
        e("v_lshlrev_b32 v6, 4, v6")
        e(f"v_mov_b32 v7, {OOB:#x}")
        e("v_mul_u32_u24 v20, 7680, v5")
        e("v_add_u32 v20, v20, v6")
        e("v_mul_u32_u24 v93, 1280, v5")
        e("v_add_u32 v93, v93, v6")
        e("s_and_b32 s4, s2, 3")
        e("s_mul_i32 s4, s4, 160")
        e("v_add_u32 v22, s4, v15")
        e("v_min_u32 v22, 639, v22")
        e("v_lshlrev_b32 v22, 1, v22")
        self.x_setup()

        def first_w1():
            e(f"s_mov_b32 s4, {((1 << 32) + 29) // 30}")
            e(f"s_mov_b32 s5, {((1 << 32) + 9) // 10}")
            for i in range(4):
                e(f"v_add_u32 v8, {256 * i}, v15")
                e("v_mul_hi_u32 v9, v8, s4")
                e("v_mul_u32_u24 v10, 30, v9")
                e("v_sub_u32 v10, v8, v10")
                e("v_mul_hi_u32 v11, v10, s5")
                e("v_mul_u32_u24 v9, 3840, v9")
                e("v_mul_u32_u24 v11, 1120, v11")
                e("v_lshl_add_u32 v9, v10, 4, v9")
                e(f"v_add_u32 v{16 + i}, v9, v11")
            e("v_cmp_gt_u32 vcc, 192, v15")
            e(f"s_mul_i32 s4, s{sJK}, {32 * 3840}")
            e(f"s_mul_i32 s5, s{sJC}, 160")
            e("s_add_u32 s4, s4, s5")
            e("v_cndmask_b32 v19, v7, v19, vcc")
            e(f"s_lshl_b32 s5, s{sW}, 10")
            self.make_srd(S_A, P_WQKV, 2457600)
            for i in range(4):
                e(f"s_add_u32 m0, s5, {L_JOB + 4096 * i}")
                e(f"buffer_load_dwordx4 v{16 + i}, {srd(S_A)}, s4 offen{c['nt']} lds", tag="job", cost=self.c["c_hbm"])
            self.make_srd(S_B, P_WMOD, 4915200)
            e(f"s_lshl_b32 s62, s{sJC}, 2")
            e(f"s_add_u32 s62, s62, s{sW}")
            e("s_mul_i32 s62, s62, 20")
            e(f"s_add_u32 s62, s62, s{sJK}")
            e("s_mul_i32 s62, s62, 3840")
            if OFF_W1P:
                e(f"s_add_u32 s62, s62, {OFF_W1P}")

        def first_slab():
            self.slab_offsets((80, 0, 160), 64, 62)
            self.make_srd(S_B, P_WMOD, 4915200)
            for i in range(5):
                self.slab_load(i, 64, 20)
        e("s_sub_u32 s3, s2, 80\ns_cmp_lt_u32 s3, 160")
        e.if_else("s_cbranch_scc0", first_w1, first_slab)
        e(f"global_load_ushort v23, v22, s[{P_C}:{P_C + 1}]")
        if c["ws_base"]:
            e(f"s_add_u32 s{P_WS}, s{P_WS}, {c['ws_base']}")
            e(f"s_addc_u32 s{P_WS + 1}, s{P_WS + 1}, 0")
        e(f"s_add_u32 s{sFL}, s{P_WS}, {OFF_FLG}")
        e(f"s_addc_u32 s{sFL + 1}, s{P_WS + 1}, 0")
        e(f"s_load_dword s{sN}, s[{sFL}:{sFL + 1}], {FL_EPOCH}")
        self.make_srd(S_X, P_X, 2621440)
        self.make_srd(S_WS, P_WS, WS_USED)
        self.make_srd(S_OUT, P_OUT, 2621440)
        e("s_lshl_b32 s64, s2, 2")
        e(f"s_add_u32 s64, s64, s{sW}")
        e("s_lshl_b32 s4, s64, 7")
        e(f"s_add_u32 s4, s4, {OFF_MOD}")
        e("v_mov_b32 v24, 0")
        e(f"buffer_load_dword v94, v24, {srd(S_WS)}, s4 offen")
        e("s_getpc_b64 s[4:5]")
        e("s_and_b32 s4, s4, 0xffffff00")
        e("s_mov_b32 s6, L_end-L_code0")
        e("s_mov_b32 s7, 0x20000")
        e.label("L_code0")
        e("s_lshr_b32 s65, s2, 3")
        e("s_lshl_b32 s65, s65, 2")
        e(f"s_add_u32 s65, s65, s{sW}")
        e("s_lshl_b32 s65, s65, 9")
        e("v_and_b32 v24, 3, v0")
        e("v_lshlrev_b32 v24, 7, v24")
        e("v_add_u32 v24, s65, v24")
        e("buffer_load_dword v95, v24, s[4:7], 0 offen")
        self.x_issue(c["x_first"])

    def shadow(self):
        e = self.e
        e("v_and_b32 v3, 15, v0")
        e("v_lshrrev_b32 v4, 4, v0")
        e("v_mul_u32_u24 v2, 12, v4")
        e("v_add_lshl_u32 v2, v2, v3, 4")
        e("v_cmp_gt_u32 vcc, 12, v3")
        e(f"s_getreg_b32 s{sMY}, hwreg(HW_REG_XCC_ID)")
        e(f"s_and_b32 s{sMY}, s{sMY}, 7")
        e("v_cndmask_b32 v2, v7, v2, vcc")
        e("v_bfe_u32 v72, v0, 2, 2")
        e("v_lshl_add_u32 v72, v4, 3, v72")
        e("v_mul_u32_u24 v72, 480, v72")
        e(f"s_mul_i32 s4, s{sW}, 40")
        e(f"s_add_u32 s4, s4, {L_JOB}")
        e("v_add_u32 v72, s4, v72")
        e("v_and_b32 v8, 3, v0")
        e("v_min_u32 v73, 2, v8")
        e("v_mul_u32_u24 v73, 160, v73")
        e("v_add_u32 v73, v73, v72")
        e("v_lshl_add_u32 v72, v8, 3, v72")
        e("v_lshrrev_b32 v9, 2, v0")
        e("v_and_b32 v10, 6, v9")
        e("v_lshlrev_b32 v10, 4, v10")
        e("v_lshlrev_b32 v9, 7, v9")
        e(f"s_lshl_b32 s4, s{sW}, 5")
        e("v_lshl_add_u32 v67, v8, 3, s4")
        e("v_xor_b32 v67, v67, v10")
        e("v_add_u32 v67, v67, v9")
        e(f"v_add_u32 v67, {L_JOB}, v67")
        e("v_lshlrev_b32 v68, 3, v4")
        e(f"v_add_u32 v68, {L_SILU}, v68")
        e("v_cmp_eq_u32 vcc, 0, v3")
        e("s_sub_u32 s4, s2, 116")
        e("s_cmp_ge_u32 s4, 112")
        e(f"s_cselect_b32 s4, 0, {OOB:#x}")
        e("v_cndmask_b32 v69, v7, v0, vcc")
        e("v_or_b32 v70, s4, v69")
        e("v_or_b32 v71, s4, v20")

    def descriptors(self):
        h, self.e.hook = self.e.hook, None
        real = self.e

        def e(t, **kw):
            real(re.sub(r"\bv(8|9|10|11|12|13|14)\b", lambda m: f"v{int(m.group(1)) + 40}", t), **kw)
        e.if_else = real.if_else
        e("v_and_b32 v8, 3, v0")
        e("v_lshrrev_b32 v9, 2, v0")
        e("v_and_b32 v10, 6, v9")
        e("v_lshlrev_b32 v10, 4, v10")
        e(f"s_lshl_b32 s65, s{sW}, 13")
        e(f"s_add_u32 s65, s65, {L_PACK}")
        e("v_lshl_add_u32 v9, v9, 7, s65")
        e("v_lshrrev_b32 v11, 5, v0")
        e("v_and_b32 v12, 3, v5")

        def w3():
            self.make_srd(S_A, P_WG, 2211840)
            self.make_srd(S_C, P_WU, 2211840)
            e(f"s_mul_hi_u32 s4, s64, {((1 << 32) + 26) // 27}")
            e("s_mul_i32 s5, s4, 27")
            e("s_sub_u32 s5, s64, s5")
            e(f"s_mul_i32 s6, s4, {32 * 3456}")
            e("s_lshl_b32 s7, s5, 7")
            for u in range(2):
                e(f"s_add_u32 s{sPK + 3 * u}, s6, s7")
                e(f"s_mov_b32 s{sPK + 3 * u + 1}, {16 * 3456}")
                e(f"s_mov_b32 s{sPK + 3 * u + 2}, {4 * 3456}")
            e("s_mul_i32 s5, s5, 160")
            e("s_add_u32 s4, s4, s5")
            e("s_lshl_b32 s4, s4, 10")
            for t in range(8):
                e(f"s_add_u32 s{sPD + t}, s4, {OFF_W3P + 20480 * t}")
            e("v_lshl_add_u32 v65, v11, 3, v12")
            e("v_mul_u32_u24 v65, 3456, v65")
            e("v_add_u32 v65, v65, v6")
            e("v_mov_b32 v66, v65")
            e("v_and_b32 v13, 1, v8")
            e("v_lshl_add_u32 v9, v13, 12, v9")
            e("v_lshrrev_b32 v13, 1, v8")
            e("v_lshl_add_u32 v9, v13, 3, v9")
            for t in range(8):
                e(f"v_xor_b32 v13, {16 * t}, v10")
                e(f"v_add_u32 v{56 + t}, v13, v9")
            e("v_and_b32 v64, 9, v3")
            e("v_and_b32 v13, 2, v3")
            e("v_lshl_or_b32 v64, v13, 1, v64")
            e("v_and_b32 v13, 4, v3")
            e("v_lshrrev_b32 v13, 1, v13")
            e("v_or_b32 v64, v64, v13")
            e("v_lshlrev_b32 v64, 4, v64")
            e("v_lshl_add_u32 v64, v4, 8, v64")

        def w24():
            e("s_sub_u32 s3, s64, 540")
            e("s_cmp_lt_u32 s3, 100")
            e(f"s_cselect_b32 s{S_A}, s{P_WO}, s{P_WD}")
            e(f"s_cselect_b32 s{S_A + 1}, s{P_WO + 1}, s{P_WD + 1}")
            e(f"s_mov_b32 s{S_A + 2}, 2211840")
            e(f"s_cselect_b32 s{S_A + 2}, 819200, s{S_A + 2}")
            e(f"s_mov_b32 s{S_A + 3}, 0x20000")
            e("s_cselect_b32 s46, 20, 54")
            e(f"s_mov_b32 s47, {OFF_W4P}")
            e(f"s_cselect_b32 s47, {OFF_W2P}, s47")
            e("s_cselect_b32 s4, 0, 100")
            for k in range(4):
                e(f"s_mov_b32 s{S_C + k}, s{S_A + k}" if k < 3 else f"s_mov_b32 s{S_C + 3}, 0x20000")
            e("s_sub_u32 s3, s3, s4")
            e(f"s_mul_hi_u32 s65, s3, {((1 << 32) + 4) // 5}")
            e("s_mul_i32 s4, s65, 5")
            e("s_sub_u32 s3, s3, s4")
            e("s_lshl_b32 s4, s65, 5")
            e("s_mov_b32 s5, 16")
            e("s_mov_b32 s6, 4")
            e("s_mov_b32 s7, 8")
            e("s_cmp_eq_u32 s46, 20")

            def wo():
                e("s_mul_i32 s4, s65, 40")
                e("s_mul_i32 s5, s65, 160")
                e(f"s_sub_u32 s5, s5, {16 * 160 - 16}")
                e("s_cmp_lt_u32 s65, 16")
                e("s_cselect_b32 s4, s4, s5")
                e("s_cselect_b32 s5, 20, 40")
                e("s_cselect_b32 s6, 8, 80")
                e("s_cselect_b32 s7, 4, 20")
            e.if_else("s_cbranch_scc0", wo)
            e("v_mul_u32_u24 v65, s7, v11")
            e("v_add_u32 v65, v65, v12")
            e("v_mul_u32_u24 v65, 1280, v65")
            e("v_add_u32 v65, v65, v6")
            e("s_cmp_lt_u32 s64, 910")
            e(f"s_cselect_b32 s7, 0, {OOB:#x}")
            e("v_or_b32 v65, s7, v65")
            e("v_mov_b32 v66, v65")
            e("v_or_b32 v64, s7, v1")
            e("s_mul_i32 s4, s4, 1280")
            e("s_lshl_b32 s7, s3, 8")
            e(f"s_add_u32 s{sPK}, s4, s7")
            e(f"s_add_u32 s{sPK + 3}, s{sPK}, 128")
            for u in range(2):
                e(f"s_mul_i32 s{sPK + 3 * u + 1}, s5, 1280")
                e(f"s_mul_i32 s{sPK + 3 * u + 2}, s6, 1280")
            e("v_lshlrev_b32 v11, 4, v8")
            e("v_and_b32 v12, 1, v8")
            e("v_lshlrev_b32 v12, 4, v12")
            e("v_lshrrev_b32 v13, 1, v8")
            e("v_lshl_add_u32 v12, v13, 3, v12")
            for gi in range(4):
                e("s_lshl_b32 s4, s3, 2")
                if gi:
                    e(f"s_add_u32 s4, s4, {gi}")
                e(f"s_mul_hi_u32 s5, s4, {((1 << 32) + 4) // 5}")
                e("s_mul_i32 s6, s5, 5")
                e("s_sub_u32 s4, s4, s6")
                e("s_lshl_b32 s5, s5, 1")
                e("s_cmp_ge_u32 s4, 3")
                e("s_cselect_b32 s6, 3, 0")
                e("s_addc_u32 s5, s5, 0")
                e("s_sub_u32 s6, s4, s6")
                e("s_lshl_b32 s6, s6, 1")
                e("s_mul_i32 s5, s5, s46")
                e("s_add_u32 s5, s5, s65")
                e("s_mul_i32 s5, s5, 5")
                e("s_add_u32 s5, s5, s6")
                e("s_lshl_b32 s5, s5, 10")
                e(f"s_add_u32 s{sPD + 2 * gi}, s5, s47")
                e("s_mul_i32 s6, s46, 5120")
                e("s_cmp_eq_u32 s4, 2")
                e("s_cselect_b32 s6, s6, 1024")
                e("s_cselect_b32 s7, 32, 8")
                e("s_cselect_b64 vcc, -1, 0")
                e(f"s_add_u32 s{sPD + 2 * gi + 1}, s{sPD + 2 * gi}, s6")
                e("v_cndmask_b32 v13, v11, v12, vcc")
                if gi & 1:
                    e("v_add_u32 v13, 64, v13")
                e("v_add_u32 v14, s7, v13")
                for p in range(2):
                    e(f"v_xor_b32 v{13 + p}, v{13 + p}, v10")
                    e(f"v_add_u32 v{56 + 2 * gi + p}, v{13 + p}, v9")
                    if gi >> 1:
                        e(f"v_add_u32 v{56 + 2 * gi + p}, 4096, v{56 + 2 * gi + p}")
        e("s_cmp_lt_u32 s64, 540")
        e.if_else("s_cbranch_scc0", w3, w24)
        self.slab_offsets((116, -96, 16), sSS, sSD)

    def second_round_queue(self):
        e = self.e
        for u in range(2):
            for i in range(4):
                def fn(q, u=u, i=i):
                    b = sPK + 3 * u
                    if i == 2:
                        e(f"s_add_u32 s{b}, s{b}, s{b + 2}")
                    if i & 1:
                        e(f"s_add_u32 s47, s{b}, s{b + 1}")
                    e(f"s_lshl_b32 m0, s{sW}, 13")
                    e(f"s_add_u32 m0, m0, {L_PACK + 4096 * u + 1024 * i}")
                    e(f"buffer_load_dwordx4 v{65 + u}, {srd((S_A, S_C)[u])}, s{47 if i & 1 else b} offen{self.c['nt']} lds", tag="pack", cost=self.c["c_hbm2"])
                self.queue.append((("pack", u, i), False, fn))
        for i in range(5):
            self.queue.append((("slab", i), False, lambda q, i=i: self.slab_load(i, sSS, 71)))

    def w1_process(self):
        e = self.e
        q = [self.pool.alloc() for _ in range(4)]
        for p in range(3):
            for h in range(2):
                e(f"ds_read_b64_tr_b16 {R(q[p], 2, 2 * h)}, v72 offset:{160 * p + 1920 * h}")
        for h in range(2):
            e(f"ds_read_b64_tr_b16 {R(q[3], 2, 2 * h)}, v73 offset:{32 + 1920 * h}")
        for p in range(3):
            e(f"buffer_store_dwordx4 {R(q[p])}, v1, {srd(S_WS)}, s62 offen offset:{1024 * p} sc1", tag="jobst", cost=(76, 1100))
        e(f"buffer_store_dwordx4 {R(q[3])}, v2, {srd(S_WS)}, s62 offen offset:3072 sc1", tag="jobst", cost=(76, 1100))
        for x in q:
            self.pool.release(x)

    def pack_process(self):
        e = self.e
        c = self.c
        pq = [self.pool.alloc() for _ in range(8)]
        L = [lambda: (self.need(("pack", 1, 3)), e.wait_tag("pack"), self.stamp("pack landed"))]
        L += [f"ds_read_b64_tr_b16 {R(pq[t], 2, 2 * h)}, v{56 + t} offset:{2048 * h}" for t in range(8) for h in range(2)]

        def weave():
            rest, out = self.queue, []
            for t in range(8):
                def fn(q, t=t):
                    e(f"buffer_store_dwordx4 {R(pq[t])}, v64, {srd(S_WS)}, s{sPD + t} offen sc1", tag="jobst", cost=c["c_pst"])
                    self.pool.release(pq[t])
                out += [(("packst", 7 - t), False, fn)] + rest[:c["st_gap"]]
                rest = rest[c["st_gap"]:]
            self.queue = out + rest
        return L + [weave]

    def first_slab_process(self):
        L, M, F, qs = self.slab_steps(62, 67, 68, 69, 24)
        for t in L + M + F:
            self.e(*t) if isinstance(t, tuple) else self.e(t)
        for q in qs:
            self.pool.release(q)

    def w1_flag(self):
        e = self.e
        e(f"s_mul_hi_u32 s5, s{sJK}, {((1 << 32) + 4) // 5}")
        e("s_mul_i32 s6, s5, 5")
        e(f"s_sub_u32 s4, s{sJK}, s6")
        e("s_lshl_b32 s4, s4, 2")
        e("s_lshl_b32 s5, s5, 7")
        e("s_add_u32 s4, s4, s5")
        e(f"s_lshl_b32 s5, s{sJC}, 9")
        e("s_add_u32 s4, s4, s5")
        e(f"s_lshl_b32 s5, s{sW}, 13")
        e("s_add_u32 s4, s4, s5")
        e(f"s_add_u32 s0, s{sFL}, s4")
        e(f"s_addc_u32 s1, s{sFL + 1}, 0")

    def x_setup(self):
        e = self.e
        e(f"s_cmp_ge_u32 s{sCB}, 5")
        e("s_cselect_b32 s66, 5, 0")
        e(f"s_sub_u32 s66, s{sCB}, s66")
        e("s_lshl_b32 s66, s66, 1")
        e(f"s_lshr_b32 s67, s{sW}, 1")
        e("s_add_u32 s66, s66, s67")
        e("s_mul_i32 s66, s66, 10240")
        e(f"s_and_b32 s68, s{sW}, 1")
        e("s_mul_i32 s67, s68, 640")
        e("s_mul_i32 s68, s68, 5120")
        e(f"s_mul_i32 s69, s{sRB}, {64 * 1280}")
        e(f"s_sub_u32 s69, s69, {16 * 1280}")

    def x_issue(self, n):
        e = self.e
        for _ in range(n):
            if self.xn == 25:
                break
            j = self.xn % 5
            if j == 0:
                if self.xn:
                    e("s_add_u32 s66, s66, 20480")
                    e("s_cmp_ge_u32 s66, 102400")
                    e("s_cselect_b32 s70, 102400, 0")
                    e("s_sub_u32 s66, s66, s70")
                e("s_add_u32 s70, s66, s69")
                e("s_max_i32 s70, s70, 0")
                e("s_add_u32 s70, s70, s67")
                e("s_add_u32 s71, s66, s68")
            e(f"s_add_u32 m0, s71, {896 * j}")
            e(f"buffer_load_dwordx4 v93, {srd(S_X)}, s70 offen offset:{128 * j}{' nt' if self.xn < self.c['x_nt'] else ''} lds",
              tag=("x", self.xn // 5), cost=self.c["c_hbm"] if self.xn < 5 else None)
            self.xn += 1

    @staticmethod
    def xf(T, i):
        return 98 + 32 * T + 6 * i

    def mod_loads(self):
        e = self.e
        L = []
        for p in range(4):
            for k in range(2):
                def fn(q, p=p, k=k):
                    if k == 0:
                        e(f"s_mul_i32 s46, s{sW}, 640")
                        e(f"s_add_u32 s46, s46, {OFF_MOD + 15360 * p}")
                    e(f"buffer_load_dwordx4 {v(self.MP + 16 * k + 4 * p, 4)}, v74, {srd(S_WS)}, s46 offen offset:{2560 * k} sc1", cost=(64, 600))
                L.append((("modp", p, k), False, fn))
        return L

    def untag_ops(self, b, n, acc):
        L = [f"s_and_b32 s47, s{sN}, 0xff"] + [f"v_xor_b32 v{b + r}, s47, v{b + r}" for r in range(n)]
        L.append(f"v_or_b32 v{acc}, v{b}, v{b + 1}")
        L += [f"v_or3_b32 v{acc}, v{acc}, v{b + r}, v{b + r + 1}" for r in range(2, n, 2)]
        return L + [f"v_and_b32 v{acc}, 0xff, v{acc}", f"v_cmp_ne_u32 vcc, 0, v{acc}"]

    def mod_check_ops(self):
        return self.untag_ops(self.MP, 32, 91)

    def mod_verdict(self, retry):
        e = self.e
        e("s_and_b32 vcc_hi, vcc_hi, 0xff")
        e("s_cmp_lg_u64 vcc, 0")
        e(f"s_cbranch_scc1 {retry}")

    def mod_side(self):
        e = self.e
        b, ca = self.MP, self.MP + 16

        def reload():
            for _, _, fn in self.mod_loads():
                fn(None)
            for t in self.mod_check_ops():
                e(t)
        L = [lambda: self.need(("modp", 3, 1))] + self.mod_check_ops()
        L.append(lambda: (self.stamp("mod chk"), self.check_or_spin(self.mod_verdict, reload), self.stamp("mod ok")))
        for p in range(1, 4):
            for k in (ca, b):
                L += [f"v_pk_add_f32 {v(k + r, 2)}, {v(k + r, 2)}, {v(k + 4 * p + r, 2)}" for r in (0, 2)]
        L += [f"v_cvt_pk_bf16_f32 v{ca + k + 1}, v{ca + k}, v{ca + k + 1}" for k in (0, 2)]
        L += [f"v_lshlrev_b32 v{ca + k}, 16, v{ca + k + 1}" for k in (0, 2)]
        L += [f"v_and_b32 v{ca + k + 1}, 0xffff0000, v{ca + k + 1}" for k in (0, 2)]
        L += [f"v_add_f32 v{ca + r}, 1.0, v{ca + r}" for r in range(4)]
        L += [f"v_cvt_pk_bf16_f32 v{ca + r}, v{ca + r}, v{b + r}" for r in range(4)]
        L.append(f"s_mov_b32 exec_hi, 0xff\nds_write_b128 v84, {v(ca, 4)}\ns_mov_b32 exec_hi, -1")
        L += [f"ds_read_b32 v{self.xw(n)}, v83 offset:{128 * (n >> 1) + 16 * (n & 1)}" for n in range(10)]
        return L

    @staticmethod
    def xw(n):
        return 48 + n if n < 8 else 80 + n

    def run(self, side, n=1):
        for _ in range(n):
            if side:
                t = side.pop(0)
                if callable(t):
                    t()
                elif isinstance(t, tuple):
                    self.e(*t)
                elif t:
                    self.e(t)

    def ln_addr(self):
        e = self.e
        e("v_and_b32 v8, 6, v3")
        e("v_xor_b32 v8, v8, v4")
        e("v_lshlrev_b32 v8, 4, v8")
        e("v_and_b32 v9, 7, v3")
        e("v_lshl_add_u32 v8, v9, 7, v8")
        e("v_lshrrev_b32 v9, 3, v3")
        e("v_mul_u32_u24 v9, 10240, v9")
        e("v_add_u32 v16, v8, v9")
        e("v_mov_b32 v85, v16")
        e(f"s_and_b32 s4, s{sW}, 1")
        e(f"s_mul_i32 s5, s{sW}, 5")
        e("s_lshr_b32 s5, s5, 1")
        e("s_lshl_b32 s5, s5, 10")
        e("s_lshl_b32 s6, s4, 6")
        e("v_xor_b32 v8, s6, v16")
        e("v_xor_b32 v9, 64, v8")
        e("v_add_u32 v8, s5, v8")
        e("s_lshl_b32 s4, s4, 10")
        e("s_add_u32 s5, s5, s4")
        e("v_add_u32 v9, s5, v9")
        e("v_add_u32 v10, 81920, v8")
        e("v_add_u32 v11, 81920, v9")
        e(f"s_lshr_b32 s4, s{sCB}, 1")
        e("s_mul_i32 s4, s4, 5")
        e(f"s_and_b32 s5, s{sCB}, 1")
        e("s_mul_i32 s6, s5, 3")
        e("s_add_u32 s6, s6, s4")
        e("s_add_u32 s4, s4, 2")
        e(f"s_add_u32 s7, s{sW}, 1")
        e("s_mul_i32 s7, s7, 20480")
        for dst, g in ((12, "s6"), (13, None), (14, "s4")):
            if g is None:
                e("s_add_u32 s6, s6, 1")
                g = "s6"
            e(f"s_lshr_b32 s3, {g}, 1")
            e("s_lshl_b32 s3, s3, 10")
            e("s_add_u32 s3, s3, s7")
            e(f"s_and_b32 s65, {g}, 1")
            e("s_lshl_b32 s65, s65, 6")
            if dst != 14:
                e(f"v_xor_b32 v{dst}, s65, v16")
            else:
                e("s_lshl_b32 s5, s5, 5")
                e("s_xor_b32 s65, s65, s5")
                e("v_and_b32 v14, 32, v0")
                e("v_xor_b32 v17, v14, v16")
                e("v_xor_b32 v17, s65, v17")
                e("v_lshrrev_b32 v14, 2, v14")
                e("v_add_u32 v14, v14, v17")
            e(f"v_add_u32 v{dst}, s3, v{dst}")
        e("v_cmp_gt_u32 vcc, 40, v0")
        for r in range(4):
            e(f"v_mov_b32 v{76 + r}, 0x3f803f80")
        e("v_cndmask_b32 v74, v7, v1, vcc")
        e("v_lshrrev_b32 v16, 2, v3")
        e("v_cmp_eq_u32 s[4:5], v16, v4")
        e("v_and_b32 v16, 1, v3")
        e("v_cmp_eq_u32 vcc, 0, v16")
        e("v_mov_b32 v16, 0x01000c0c")
        e("v_mov_b32 v17, 0x0c0c0100")
        e("v_mov_b32 v18, 0x0c0c0c0c")
        e("v_cndmask_b32 v16, v16, v17, vcc")
        e("v_cndmask_b32 v16, v18, v16, s[4:5]")
        e("v_and_b32 v17, 2, v3")
        e("v_cmp_eq_u32 vcc, 0, v17")
        e("v_mov_b32 v82, 0x03020302")
        e("v_mov_b32 v17, 0x01000100")
        e("v_cndmask_b32 v80, v18, v16, vcc")
        e("v_cndmask_b32 v81, v16, v18, vcc")
        e("v_cmp_eq_u32 vcc, 0, v4")
        e("v_lshrrev_b32 v16, 2, v3")
        e("v_lshlrev_b32 v16, 5, v16")
        e("v_cndmask_b32 v82, v82, v17, vcc")
        e("v_cmp_gt_u32 vcc, 2, v4")
        e("v_and_b32 v17, 3, v3")
        e("s_nop 0")
        e("v_cndmask_b32 v82, v18, v82, vcc")
        e("v_and_b32 v17, 3, v3")
        e("v_lshl_add_u32 v16, v17, 2, v16")
        e(f"s_mul_i32 s4, s{sW}, 640")
        e(f"s_add_u32 s4, s4, {L_AS}")
        e("v_add_u32 v83, s4, v16")
        e("v_add_u32 v84, s4, v1")


    def own_stats(self):
        e = self.e
        X, G, S = 100, 120, 124
        e(f"s_cmp_ge_u32 s{sCB}, 5")
        e("s_cselect_b32 s4, 5, 0")
        e(f"s_sub_u32 s4, s{sCB}, s4")
        e("s_mul_i32 s5, s4, 20480")
        e("v_add_u32 v128, s5, v8")
        e("v_add_u32 v129, s5, v9")
        for i in range(5):
            e(f"ds_read_b128 {v(X + 4 * i, 4)}, v{128 + (i & 1)} offset:{(i >> 1) * 1024}")
        e("s_lshl_b32 s4, s4, 8")
        e(f"s_mul_i32 s5, s{sRB}, 1280")
        e(f"s_add_u32 s63, s5, {OFF_LN}".replace("s63", "s61"))
        e("s_add_u32 s60, s61, s4")
        e("v_lshrrev_b32 v130, 2, v3")
        e("v_cmp_eq_u32 s[6:7], v130, v4")
        e("v_and_b32 v130, 3, v3")
        e("v_cmp_eq_u32 s[4:5], 1, v130")
        e("v_cmp_eq_u32 s[64:65], 2, v130")
        e("v_cmp_eq_u32 vcc, 3, v130")
        e("v_lshlrev_b32 v131, 5, v3")
        e(f"v_add_u32 v131, {L_STAT}, v131")
        e(f"s_lshl_b32 s3, s{sW}, 3")
        e("v_add_u32 v130, s3, v131")
        for i in range(5):
            x = v(X + 4 * i, 4)
            self.mfma(v(G, 4), x, x, "0" if i == 0 else None)
            self.mfma(v(S, 4), v(76, 4), x, "0" if i == 0 else None)
        e(f"s_cmp_ge_u32 s{sCB}, 5")
        e(f"s_cselect_b32 s3, 1, s{sW}")
        e("s_lshl_b32 s3, s3, 30")
        e("v_lshlrev_b32 v132, 28, v4")
        e("v_or3_b32 v132, v132, s3, v1")
        e(f"v_cndmask_b32 v{S + 1}, v{G}, v{G + 1}, s[4:5]")
        e(f"v_cndmask_b32 v{S + 1}, v{S + 1}, v{G + 2}, s[64:65]")
        e(f"v_cndmask_b32 v{S + 1}, v{S + 1}, v{G + 3}, vcc")
        e("s_mov_b64 exec, s[6:7]")
        e(f"ds_write_b64 v130, {v(S, 2)}")
        e("s_mov_b64 exec, -1")

    def own_publish(self):
        e = self.e
        b = 100
        e(f"ds_read_b128 {v(b, 4)}, v131")
        e(f"ds_read_b128 {v(b + 4, 4)}, v131 offset:16")
        e(f"s_mov_b32 s4, {f32(-1.0 / 640)}")
        e("s_mov_b32 s5, 0x07060302")
        e("s_mov_b32 s6, 0xffff0000")
        e(f"v_mov_b32 v{b + 9}, s{sN}")
        e(f"v_lshlrev_b32 v{b + 10}, 16, v{b + 9}")
        steps = ["v_pk_add_f32 v[{0}:{1}], v[{0}:{1}], v[{2}:{3}]", "v_pk_add_f32 v[{4}:{5}], v[{4}:{5}], v[{6}:{7}]",
                 "v_pk_add_f32 v[{0}:{1}], v[{0}:{1}], v[{4}:{5}]", "v_mul_f32 v{0}, s4, v{0}", "v_mul_f32 v{1}, s4, v{1}",
                 "v_fma_f32 v{1}, -v{0}, v{0}, -v{1}", "v_and_b32 v{2}, s6, v{0}", "v_max_f32 v{1}, 0, v{1}",
                 "v_sub_f32 v{2}, v{0}, v{2}", "v_add_f32 v{1}, " + f32(1e-5) + ", v{1}", "v_and_b32 v{3}, s6, v{2}",
                 "v_sqrt_f32 v{1}, v{1}", "v_sub_f32 v{3}, v{2}, v{3}",
                 "v_perm_b32 v{4}, v{2}, v{0}, s5", "v_and_b32 v{2}, s6, v{1}", "v_perm_b32 v{5}, v{9}, v{3}, s5",
                 "v_sub_f32 v{2}, v{1}, v{2}", "v_and_b32 v{3}, s6, v{2}", "v_perm_b32 v{6}, v{2}, v{1}, s5",
                 "v_sub_f32 v{3}, v{2}, v{3}", "v_perm_b32 v{7}, v{10}, v{3}, s5"]
        for t in steps:
            e(t.format(*range(b, b + 11)))
        e(f"buffer_store_dwordx4 {v(b + 4, 4)}, v132, {srd(S_WS)}, s60 offen sc1", cost=(64, 700))
        e("v_and_b32 v92, 1, v4")
        e("v_cmp_eq_u32 vcc, 0, v92")
        e("v_lshlrev_b32 v92, 3, v92")
        e("v_lshl_add_u32 v92, v3, 4, v92")
        e(f"v_cndmask_b32 v90, v{b + 10}, v{b + 9}, vcc")
        e("v_and_b32 v90, s6, v90")

    def ln_loads(self):
        return [(("lns", T), False, lambda q, T=T: self.e(
            f"buffer_load_dwordx2 {v(self.xf(T, 0) - 2, 2)}, v92, {srd(S_WS)}, s61 offen offset:{256 * T} sc1", tag="lns", cost=(32, 600)))
            for T in range(5)]

    def ln_check(self, retry):
        e = self.e
        g = [self.xf(T, 0) - 1 for T in range(5)]
        for r in g:
            e(f"v_xor_b32 v{r}, v90, v{r}")
        e(f"v_or3_b32 v91, v{g[0]}, v{g[1]}, v{g[2]}")
        e(f"v_or3_b32 v91, v91, v{g[3]}, v{g[4]}")
        e("v_cmp_lt_u32 vcc, 0xffff, v91")
        e(f"s_cbranch_vccnz {retry}")

    def rstd_ops(self):
        save = [f"v_mov_b64 {v(92 + 2 * T, 2)}, {v(self.xf(T, 0) - 2, 2)}" for T in (3, 4)]
        src = [96, 128, 160, 98, 100]
        L = ["v_lshlrev_b32 v91, 2, v3", f"v_add_u32 v91, {L_RS}, v91"]
        for t in ("v_lshlrev_b32 v{a}, 16, v{g}", "v_and_b32 v{g}, s71, v{g}", "v_add_f32 v{a}, v{a}, v{g}",
                  "v_lshlrev_b32 v{h}, 16, v{h}", "v_add_f32 v{a}, v{a}, v{h}", "v_rcp_f32 v{a}, v{a}"):
            L += [t.format(a=106 + T, g=src[T], h=src[T] + 1) for T in range(5)]
        L += [f"s_mov_b32 exec_lo, s71\ns_mov_b32 exec_hi, 0\nds_write_b32 v91, v{106 + T} offset:{64 * T}\ns_mov_b64 exec, -1"
              for T in range(5)]
        return save, L

    def finish_stats(self, s, q, out):
        e = self.e
        e(f"v_mul_f32 v{s}, s4, v{s}")
        e(f"v_mul_f32 v{q}, s4, v{q}")
        e(f"v_fma_f32 v{q}, -v{s}, v{s}, v{q}")
        e(f"v_max_f32 v{q}, 0, v{q}")
        e(f"v_add_f32 v{q}, {f32(1e-5)}, v{q}")
        e(f"v_rsq_f32 v{out}, v{q}")
        e(f"v_mul_f32 v{out + 1}, -v{s}, v{out}")

    def round_bf16(self, b, n):
        e = self.e
        for k in range(0, n, 2):
            e(f"v_cvt_pk_bf16_f32 v{b + k + 1}, v{b + k}, v{b + k + 1}")
            e(f"v_lshlrev_b32 v{b + k}, 16, v{b + k + 1}")
            e(f"v_and_b32 v{b + k + 1}, s71, v{b + k + 1}")

    def w1_queue(self):
        e = self.e
        e(f"s_lshl_b32 s70, s{sCB}, 2")
        e(f"s_add_u32 s70, s70, s{sW}")
        e("s_mul_i32 s70, s70, 76800")
        if OFF_W1P:
            e(f"s_add_u32 s70, s70, {OFF_W1P}")
        for ks in range(20):
            for p in range(4):
                def fn(q, ks=ks, p=p):
                    if p == 0 and ks:
                        e("s_add_u32 s70, s70, 3840")
                    e(f"buffer_load_dwordx4 {R(q)}, v{2 if p == 3 else 1}, {srd(S_WS)}, s70 offen offset:{1024 * p} sc1", cost=self.c["c_w"])
                self.queue.append((("w1", ks, p), True, fn))

    def ln_apply(self):
        e = self.e
        c = self.c
        D = [32, 40, 72]
        order = [(T, i) for i in range(5) for T in range(5)]

        def operand(i):
            L = []
            for p in range(2):
                x = self.xw(2 * i + p)
                sel = (82, 82, 80, 81) if p == 0 else (80, 81, 82, 82)
                L += [f"v_perm_b32 v{16 + 8 * (i & 1) + 4 * p + r}, v{x}, v{x}, v{sel[r]}" for r in range(4)]
            return L

        def lds(op, n):
            T, i = order[n]
            a, x = f"v{(8 if T < 4 else 10) + (i & 1)}", v(self.xf(T, i), 4)
            return f"{op} {x + ', ' + a if 'read' in op else a + ', ' + x} offset:{(T % 4) * 20480 + (i >> 1) * 1024}"

        def cvt(n):
            T, i = order[n]
            return [f"v_cvt_pk_bf16_f32 v{self.xf(T, i) + r}, v{D[n % 3] + 2 * r}, v{D[n % 3] + 2 * r + 1}" for r in range(4)]
        self.auto(c["depth_x"])
        side = self.mod_side()
        self.run(side, len(side))
        self.need(("lns", 4))
        e.wait_tag("lns")
        self.check_or_spin(self.ln_check, lambda: [fn(None) for _, _, fn in self.ln_loads()])
        self.stamp("ln ok")
        self.pf(99)
        self.f1_load()
        for T, i in order:
            e(f"v_mov_b64 {v(self.xf(T, i) + 4, 2)}, {v(self.xf(T, 0) - 2, 2)}")
        self.run(operand(0) + operand(1), 16)
        pack = self.pack_process()
        self.run(pack, len(pack) - 1)
        self.check_or_spin(self.f1_check, self.f1_load)
        e("s_mov_b32 s71, 0xffff0000")
        self.auto(None)
        self.w1_queue()
        self.stamp("opnd")
        e.wait_tag(*[("x", j) for j in range(5)])
        e("s_barrier")
        self.stamp("x landed")
        e(f"ds_read_b128 a[{XRES}:{XRES + 3}], v12", tag="xres")
        e(f"ds_read_b128 a[{XRES + 4}:{XRES + 7}], v13", tag="xres")
        e(f"ds_read_b64 a[{XRES + 8}:{XRES + 9}], v14", tag="xres")
        reads = [lds("ds_read_b128", n) for n in range(25)]
        self.run(reads, 5)
        self.pf(c["w1_first"])
        self.run(pack)
        self.auto(c["depth_ln"], True)
        writes, nxt = [], []
        for n in range(27):
            self.stamp(f"ap{n}")
            o = cvt(n - 2) if n >= 2 else []
            if n < 25:
                T, i = order[n]
                if T == 0 and 0 < i < 4:
                    nxt = operand(i + 1)
                b, x = 16 + 8 * (i & 1), self.xf(T, i)
                self.run(o, 2)
                self.mfma(v(D[n % 3], 4), v(b, 4), v(x - 2, 4), "0")
                self.run(o, 2)
                self.mfma(v(D[n % 3] + 4, 4), v(b + 4, 4), v(x + 2, 4), "0")
            self.run(o, 4)
            if n >= 2:
                writes.append(lds("ds_write_b128", n - 2))
            if reads:
                self.run(reads, c["ap_rd"])
                if not reads:
                    e.wait_tag("xres")
                    e("s_barrier")
            else:
                self.run(writes, 2 if n % c["ap_catch"] == 0 else 1)
            self.run(nxt, 2)
        self.run(self.rstd_ops()[0] if len(writes) < 15 else None, 2)
        self.run(writes, 99)

    def f1_load(self):
        self.e(f"s_load_dwordx8 s[{sPOLL}:{sPOLL + 7}], s[{sFL}:{sFL + 1}], s62 glc")

    def f1_check(self, top):
        for k in range(5):
            self.e(f"s_cmp_lg_u32 s{sPOLL + k}, s{sN}")
            self.e(f"s_cbranch_scc1 {top}")

    def phase0(self):
        e = self.e
        c = self.c
        self.MP = 16
        self.prologue()
        self.shadow()
        self.ln_addr()
        self.descriptors()
        self.w1_flag()
        L = self.touch1()
        self.touch_load = L.pop()
        self.run(L, len(L))
        e("s_mov_b64 exec, 0xf00000")
        e(self.touch_load, cost=(20, 1400))
        e("s_mov_b64 exec, -1")
        e("v_lshlrev_b32 v26, 1, v15")
        e(f"v_add_u32 v26, {L_SILU}, v26")
        self.stamp("shadow")
        e("v_lshlrev_b32 v23, 16, v23")
        e(f"v_mul_f32 v25, {f32(-LOG2E)}, v23")
        e("v_exp_f32 v25, v25")
        e("v_add_f32 v25, 1.0, v25")
        e("v_rcp_f32 v25, v25")
        e("v_mul_f32 v25, v23, v25")
        e("v_cvt_pk_bf16_f32 v25, v25, v25")
        e("ds_write_b16 v26, v25")
        e(f"s_add_u32 s{sN}, s{sN}, 0x01010101")
        e(f"s_and_b32 s4, s{sN}, 0xfffffff8")
        e(f"s_or_b32 s{sMY}, s{sMY}, s4")
        self.second_round_queue()
        src = dict(h=self.queue, x=[(("x", n), False, lambda q: self.x_issue(1)) for n in range(self.xn, 25)])
        self.queue = []
        for ch in c["order"]:
            self.queue += self.mod_loads() if ch == "m" else self.ln_loads() if ch == "l" else [src[ch].pop(0)]
        assert not src["h"] and not src["x"]
        self.gate = lambda key: key[0] in ("x", "pack")
        self.pf(c["x_second"])
        e.wait_tag("job", ("x", 0))
        e.barrier()
        self.stamp("job landed")
        e("s_sub_u32 s3, s2, 80\ns_cmp_lt_u32 s3, 160")
        e.if_else("s_cbranch_scc0", self.w1_process, self.first_slab_process)
        self.stamp("job done")
        self.pf(c["x_third"])
        self.own_stats()
        e.barrier()
        self.own_publish()
        self.stamp("published")
        self.gate = lambda key: True
        self.pf(c["flag_after"])
        e(f"s_lshl_b32 s62, s{sXCD}, 12")
        e(f"s_lshl_b32 s5, s{sCB}, 9")
        e("s_add_u32 s62, s62, s5")
        e(f"s_lshl_b32 s5, s{sW}, 7")
        e("s_add_u32 s62, s62, s5")
        e(f"s_add_u32 s62, s62, {FL_F1}")
        e.wait_tag("jobst")
        e.barrier()
        e("s_sub_u32 s3, s2, 80\ns_cmp_lt_u32 s3, 160")
        e.if_else("s_cbranch_scc0", lambda: [e(f"s_atomic_swap s{sN}, s[0:1], {FL_F1 + 4096 * r:#x}") for r in range(2)])
        self.stamp("flagged")
        self.f3_prepare()
        self.ln_apply()
        self.stamp("applied")
        e("v_mov_b32 v8, v85")
        e("v_xor_b32 v9, 64, v85")
        e("v_add_u32 v10, 61440, v8")
        e("v_add_u32 v11, 61440, v9")
        e.wait_tag("job")
        e.barrier()
        self.stamp("h1 ready")

    def f3_prepare(self):
        for t in (f"s_lshl_b32 s0, s{sPAIR}, 9", f"s_lshr_b32 s5, s{sM}, 2", "s_lshl_b32 s5, s5, 7", "s_add_u32 s0, s0, s5",
                  f"s_and_b32 s5, s{sM}, 3", "s_lshl_b32 s5, s5, 2", "s_add_u32 s0, s0, s5", f"s_add_u32 s0, s0, {OFF_FLG + FL_F3}",
                  f"v_mov_b32 v94, {OOB:#x}", f"v_mov_b32 v95, s{sMY}", f"s_lshl_b32 s5, s{sW}, 30", "v_writelane_b32 v94, s5, 0"):
            self.e(t)

    def later_setup(self):
        return [f"s_lshl_b32 s64, s{sM}, 2", f"s_add_u32 s64, s64, s{sW}", "s_mul_i32 s64, s64, 61440", f"s_add_u32 s64, s64, {OFF_W3P}",
                f"s_mul_i32 s4, s{sW}, 14", f"s_cmp_eq_u32 s{sW}, 3\ns_cselect_b32 s68, 41, s4",
                f"s_mul_i32 s65, s{sCB}, 54", "s_add_u32 s65, s65, s68", "s_mul_i32 s65, s65, 5120", f"s_add_u32 s65, s65, {OFF_W4P}",
                f"s_mul_i32 s66, s{sM}, 40960", f"s_mul_i32 s60, s{sW}, 10240", "s_add_u32 s66, s66, s60",
                f"s_add_u32 s66, s66, {OFF_W3P + 192 * 20480}", f"s_mul_i32 s5, s{sCB}, 102400", "s_add_u32 s67, s5, s60",
                f"s_add_u32 s67, s67, {OFF_W2P + 61440}", f"s_mul_i32 s61, s{sW}, 15360", "s_add_u32 s62, s5, s61",
                f"s_add_u32 s62, s62, {OFF_W2P}", "v_add_u32 v5, 20480, v1", "v_add_u32 v6, 40960, v1",
                f"s_cmp_ge_u32 s{sM}, 12\ns_cselect_b32 s4, {OOB:#x}, 0", "v_or_b32 v7, s4, v1",
                f"s_cmp_ge_u32 s{sW}, 2\ns_cselect_b32 s69, {OOB:#x}, 0", "v_or_b32 v13, s69, v1"]

    def later_queue(self):
        e = self.e
        c = self.c
        s3, s4_, sx, s2_, s2b = Stream(e, 64), Stream(e, 65), Stream(e, 66), Stream(e, 67), Stream(e, 62)
        w3, w4, w3x, w2 = [], [], [], []
        for ks in range(20):
            for t in range(3):
                def fn(q, ks=ks, t=t):
                    e(f"buffer_load_dwordx4 {R(q)}, v{(1, 5, 6)[t]}, {srd(S_WS)}, {s3.off(1024 * ks)} sc1", cost=c["c_w3"])
                w3.append((("w3", ks, t), True, fn))
        for i in range(14):
            for ct in range(5):
                def fn(q, i=i, ct=ct):
                    e(f"buffer_load_dwordx4 {R(q)}, v{13 if i == 13 else 1}, {srd(S_WS)}, {s4_.off(1024 * (5 * i + ct))} sc1", cost=c["c_w"])
                w4.append((("w4", i, ct), True, fn))
        for n in range(10):
            def fn(q, n=n):
                o = sx.off(1024 * n)
                self.set_m0(60, L_W3X + n // 4 * 4096)
                e(f"buffer_load_dwordx4 v7, {srd(S_WS)}, {o} sc1 lds", tag="w3x", cost=c["c_w3"])
            w3x.append((("w3x", n), False, fn))
        for part, cnt, base, st in ((0, 10, 61440, s2_), (1, 15, 0, s2b)):
            for n in range(cnt):
                def fn(q, n=n, cnt=cnt, base=base, st=st):
                    o = st.off(1024 * n)
                    self.set_m0(60 if cnt == 10 else 61, L_W2 + base + n // 4 * 4096)
                    e(f"buffer_load_dwordx4 v1, {srd(S_WS)}, {o} sc1 lds", tag="w2", cost=c["c_w"])
                w2.append((("w2", part, n), False, fn))
        return w2, w3, w3x, w4

    def touch1(self):
        L = [f"s_lshl_b32 s4, s{sRB}, 5", f"s_lshl_b32 s5, s{sCB}, 2", "s_add_u32 s4, s4, s5", f"s_add_u32 s6, s4, s{sW}",
             "s_mul_i32 s4, s6, 2560", f"s_add_u32 s4, s4, {OFF_O}", f"v_min_u32 v86, {0 if self.c['o_mode'] == 'sc1' else 19}, v0", "v_lshl_add_u32 v86, v86, 7, s4"]
        for lane, sh, off in ((20, 8, OFF_ST), (21, 8, OFF_ST + 128), (22, 7, OFF_FLG + FL_S1), (23, 6, OFF_FLG + FL_S2)):
            L += [f"s_lshl_b32 s4, s6, {sh}", f"s_add_u32 s4, s4, {off}", f"v_writelane_b32 v86, s4, {lane}"]
        L.append(f"buffer_load_dword v87, v86, {srd(S_WS)}, 0 offen")
        return L

    def touch3(self):
        e = self.e
        e(f"s_lshl_b32 s4, s{sRB}, 5")
        e(f"s_lshl_b32 s5, s{sCB}, 2")
        e("s_add_u32 s4, s4, s5")
        e(f"s_add_u32 s6, s4, s{sW}")
        e("s_lshl_b32 s4, s6, 6")
        e(f"s_add_u32 s4, s4, {OFF_FLG + FL_S3}")
        e("v_mov_b32 v11, 0")
        e(f"buffer_load_dword v11, v11, {srd(S_WS)}, s4 offen{self.c['touch_mod']}")
        if self.c["h_mode"] == "touch":
            e("s_mul_i32 s4, s6, 6912")
            e(f"s_add_u32 s4, s4, {OFF_H}")
            e("v_min_u32 v12, 53, v0")
            e("v_lshlrev_b32 v12, 7, v12")
            e(f"buffer_load_dword v12, v12, {srd(S_WS)}, s4 offen{self.c['touch_mod']}")

    def f3_load(self):
        self.e(f"buffer_load_dwordx4 {v(40, 4)}, v44, {srd(S_WS)}, 0 offen sc1", cost=(200, 800))

    def f3_ops(self):
        L = [f"v_xor_b32 v{r}, s{sMY}, v{r}" for r in range(40, 44)]
        return L + ["v_or_b32 v40, v40, v41", "v_or3_b32 v40, v40, v42, v43", "v_cmp_ne_u32 s[4:5], 0, v40", "v_cmp_lt_u32 vcc, 7, v40"]

    def mv_issue(self):
        e = self.e
        e("v_min_u32 v45, 304, v1")
        e(f"s_mul_i32 s46, s{sW}, 2560")
        e(f"s_mul_i32 s47, s{sCB}, 320")
        e("s_add_u32 s46, s46, s47")
        e(f"s_add_u32 s46, s46, {OFF_MOD + 5120}")
        for p in range(4):
            if p:
                e("s_add_u32 s46, s46, 15360")
            e(f"buffer_load_dwordx4 {v(48 + 4 * p, 4)}, v45, {srd(S_WS)}, s46 offen sc1", cost=(40, 800))

    def mv_check(self, retry):
        for t in self.untag_ops(48, 16, 47):
            self.e(t)
        self.e(f"s_cbranch_vccnz {retry}")

    def mv_process(self):
        e = self.e
        self.check_or_spin(self.mv_check, self.mv_issue)
        for h in range(2):
            e(f"v_pk_add_f32 {v(48 + 2 * h, 2)}, {v(48 + 2 * h, 2)}, {v(52 + 2 * h, 2)}")
            e(f"v_pk_add_f32 {v(56 + 2 * h, 2)}, {v(56 + 2 * h, 2)}, {v(60 + 2 * h, 2)}")
            e(f"v_pk_add_f32 {v(48 + 2 * h, 2)}, {v(48 + 2 * h, 2)}, {v(56 + 2 * h, 2)}")
        self.round_bf16(48, 4)
        e(f"s_cmp_eq_u32 s{sW}, 2")
        e("s_cselect_b32 s4, 1.0, 0")
        for r in range(4):
            e(f"v_add_f32 v{48 + r}, s4, v{48 + r}")
        self.round_bf16(48, 4)
        e(f"s_mul_i32 s4, s{sW}, 320")
        e(f"s_add_u32 s4, s4, {L_MV}")
        e("v_add_u32 v45, s4, v1")
        e("s_mov_b64 exec, 0xfffff")
        e(f"ds_write_b128 v45, {v(48, 4)}")
        e("s_mov_b64 exec, -1")

    def phase1(self):
        e = self.e
        c = self.c
        X = [16 + 4 * T for T in range(5)]
        acc = {}
        n = 180
        for p in range(4):
            for T in range(5):
                if p == 0 and T == 0:
                    continue
                acc[p, T] = n
                n += 4
        self.acc1 = acc

        def rd(T, ks):
            e(f"ds_read_b128 {v(X[T], 4)}, v{(8 if T < 3 else 10) + (ks & 1)} offset:{(T % 3) * 20480 + 1024 * (ks >> 1)}")
        for T in range(5):
            rd(T, 0)
        L, M, F, sq = self.slab_steps(sSD, 67, 68, 70, 112)
        self.hold = 0
        rs = self.rstd_ops()[1]
        side = L + rs[:4] + M + rs[4:12] + F + [lambda: [self.pool.release(q) for q in sq]] + rs[12:]
        for ks in range(20):
            self.auto(c["depth"], True, max(c["depth"], c["k1_ahead"] - c["k1_decay"] * ks))
            self.stamp(f"k1_{ks}")
            W = [self.need(("w1", ks, p)) for p in range(4)]
            for T in range(5):
                for p in range(4):
                    if (p, T) not in acc:
                        continue
                    z = "0" if ks == 0 else None
                    if p == 2:
                        self.mfma(v(acc[p, T], 4), v(X[T], 4), R(W[p]), z)
                    else:
                        self.mfma(v(acc[p, T], 4), R(W[p]), v(X[T], 4), z)
                    if not self.last_pf:
                        self.run(side)
                if ks < 19:
                    rd(T, ks + 1)
            for q in W:
                self.pool.release(q)
            if ks == c["f3_set"]:
                self.need(("packst", 0))
                e.wait_tag("jobst")
                e("s_barrier")
                e(f"buffer_store_dword v95, v94, {srd(S_WS)}, s0 offen sc1", cost=(20, 700))
                self.stamp("f3 set")
            if ks == 1:
                side += [f"s_lshl_b32 s4, s{sW}, 11", f"s_lshl_b32 s5, s{sPAIR}, 9", "v_lshl_add_u32 v44, v3, 7, s4",
                         "v_and_b32 v45, 3, v0", "v_lshl_add_u32 v45, v45, 7, s5", "v_cmp_eq_u32 vcc, 0, v4", None,
                         "v_cndmask_b32 v44, v45, v44, vcc", f"v_add_u32 v44, {OFF_FLG + FL_F3}, v44"]
                side += self.later_setup()
            if ks == c["touch1"]:
                side.append((self.touch_load, None, (230, 700)))
            if ks == c["f3_load"]:
                assert not side
                self.f3_load()
            if ks == c["f3_check"]:
                def verdict():
                    self.stamp("f3 chk")
                    self.check_or_spin(lambda top: e(f"s_cbranch_vccnz {top}"),
                                       lambda: (e("s_sleep 8"), self.f3_load(), self.run(self.f3_ops(), 8)))
                    e("s_barrier")
                    self.stamp("f3 ok")
                    e(f"s_cmp_eq_u32 s5, 0\ns_cselect_b32 s{sFAST}, {0 if c.get('force_slow') else 1}, 0")
                    self.w2, self.w3, self.w3x, self.w4 = self.later_queue()
                    self.queue += [(("mv",), False, lambda q: self.mv_issue())] + self.w2[:10] + self.w3[:c["w3_early"]]
                    self.w3 = self.w3[c["w3_early"]:]
                side += self.f3_ops() + [verdict] + self.att_setup()
        assert not side
        e("s_barrier")
        self.stamp("k1 end")
        early = [x for x in self.queue if x[0][0] != "w3"]
        w3 = [x for x in self.queue if x[0][0] == "w3"] + self.w3
        n3 = max(0, c["w3_pre"] - (60 - len(w3)))
        a, b = self.w3x + w3[:n3], list(self.w4)
        mix = []
        while a:
            mix.append(a.pop(0))
            for _ in range(c["mix4"]):
                mix.append(b.pop(0))
        self.queue = early + self.w2[10:] + mix
        self.w3 = w3[n3:]
        self.bulk = b
        self.reserve = 0

    def att_setup(self):
        BI, MK, BI0, ONE, RS, RV = 130, 138, 142, 146, 150, 160
        L = [f"s_mul_i32 s4, s{sW}, 2560", f"s_add_u32 s4, s4, {L_ATT}", "v_lshl_add_u32 v36, v3, 3, s4",
             "v_lshl_add_u32 v37, v0, 3, s4", "v_lshrrev_b32 v38, 2, v0", "v_lshl_add_u32 v38, v38, 3, s4",
             f"s_mov_b32 s4, {L_RS}", "v_lshl_add_u32 v40, v3, 2, s4", "v_lshl_add_u32 v41, v4, 4, s4"]
        for T in range(5):
            L.append(f"ds_read_b32 v{RS + 2 * T}, v40 offset:{64 * T}")
        for T in range(5):
            L.append(f"ds_read_b128 {v(RV + 4 * T, 4)}, v41 offset:{64 * T}")
        L += ["v_lshlrev_b32 v40, 2, v4", "v_sub_u32 v40, v3, v40", f"v_mov_b32 v41, {f32(-1e30)}", "v_and_b32 v42, 1, v3",
              "v_cmp_eq_u32 vcc, 0, v42", "v_mov_b32 v43, 0xffff", "v_mov_b32 v44, s71", "v_cndmask_b32 v43, v44, v43, vcc",
              "v_sub_u32 v40, v40, v42"]
        for h in range(2):
            L += [f"v_cmp_le_i32 vcc, {2 * h}, v40", None, f"v_cndmask_b32 v{MK + 2 + h}, 0, v43, vcc", f"v_xor_b32 v{MK + h}, v{MK + 2 + h}, v43"]
        for u in range(2):
            for r in range(4):
                L += [f"v_bfe_i32 v{BI + 4 * u + r}, v{MK + 2 * u + (r >> 1)}, {16 * (r & 1)}, 1\n"
                      f"v_bfi_b32 v{BI + 4 * u + r}, v{BI + 4 * u + r}, 0, v41"]
        L.append(f"s_cmp_eq_u32 s{sRB}, 0\ns_cselect_b64 vcc, -1, 0")
        for r in range(4):
            L.append(f"v_cndmask_b32 v{BI0 + r}, v{BI + r}, v41, vcc\nv_mov_b32 v{ONE + r}, 0x3f803f80")
        L += ["v_and_b32 v34, 31, v0".replace("v34", "v39"), "v_lshlrev_b32 v39, 4, v39", "v_lshrrev_b32 v40, 5, v0",
              "v_mul_u32_u24 v40, 20480, v40", "v_add_u32 v39, v39, v40", "v_mul_u32_u24 v40, 20480, v4", "v_lshl_add_u32 v40, v3, 3, v40",
              "v_cmp_eq_u32 s[30:31], 1, v4", "v_cmp_eq_u32 s[32:33], 2, v4", "v_cmp_eq_u32 s[28:29], 3, v4"]
        return L

    def attention(self):
        e = self.e
        c = self.c
        acc = self.acc1
        E = e
        self.auto(c["depth_att"])
        Q = {T: 64 + 4 * (T - 1) for T in range(1, 5)}
        K = {T: 80 + 4 * T for T in range(5)}
        V0, VL = 100, 110
        C = 120
        BI, MK, BI0, ONE, RS, RV = 130, 138, 142, 146, 150, 160

        def scale(p, T):
            a = acc[p, T]
            for h in range(2):
                if p == 2:
                    E(f"v_pk_mul_f32 {v(a + 2 * h, 2)}, {v(a + 2 * h, 2)}, {v(RV + 4 * T + 2 * h, 2)}")
                else:
                    E(f"v_pk_mul_f32 {v(a + 2 * h, 2)}, {v(a + 2 * h, 2)}, {v(RS + 2 * T, 2)} op_sel_hi:[1,0]")
        def cvt(dst, p, T):
            for h in range(2):
                E(f"v_cvt_pk_bf16_f32 v{dst + h}, v{acc[p, T] + 2 * h}, v{acc[p, T] + 2 * h + 1}")
        E("v_cmp_eq_u32 vcc, 0, v4")
        for T in range(5):
            scale(3, T)
        for T in range(5):
            cvt(C + 2 * T, 3, T)
        for T in range(5):
            E(f"ds_write_b64 v37, {v(C + 2 * T, 2)} offset:{512 * T}")
            scale(1, T)
        for T in range(5):
            E(f"ds_read_b64 {v(K[T] + 2, 2)}, v36 offset:{512 * T + 128}")
            if T:
                scale(0, T)
        for T in range(5):
            E(f"ds_read_b64_tr_b16 {v(VL + 2 * T, 2)}, v38 offset:{512 * T + 256}")
            scale(2, T)
        for T in range(5):
            cvt(K[T], 1, T)
        for T in range(1, 5):
            cvt(Q[T], 0, T)
            E(f"v_cndmask_b32 v{Q[T] + 2}, 0, v{C + 2 * T}, vcc")
            E(f"v_cndmask_b32 v{Q[T] + 3}, 0, v{C + 2 * T + 1}, vcc")
        self.stamp("att cvt")
        S = {T: 180 + 8 * (T - 1) for T in range(1, 5)}
        for T in range(1, 5):
            self.mfma(v(S[T], 4), v(K[T - 1], 4), v(Q[T], 4), v(BI0 if T == 1 else BI, 4))
            self.mfma(v(S[T] + 4, 4), v(K[T], 4), v(Q[T], 4), v(BI + 4, 4))
        for T in range(5):
            a = acc[2, T]
            E(f"v_cvt_pk_bf16_f32 v{V0 + 2 * T}, v{a}, v{a + 1}")
            E(f"v_cvt_pk_bf16_f32 v{V0 + 2 * T + 1}, v{a + 2}, v{a + 3}")
        Z = {T: 16 + 4 * (T - 1) for T in range(1, 5)}
        for t in ("v_max3_f32 v{z0}, v{s0}, v{s1}, v{s4}", "v_max3_f32 v{z1}, v{s2}, v{s3}, v{s6}", "v_max_f32 v{z0}, v{z0}, v{s5}",
                  "v_max_f32 v{z1}, v{z1}, v{s7}", "v_max_f32 v{z2}, v{z0}, v{z1}", "v_max_f32 v{z3}, v{z0}, v{z1}"):
            for T in range(1, 5):
                E(t.format(**{f"s{k}": S[T] + k for k in range(8)}, **{f"z{k}": Z[T] + k for k in range(4)}))
        for sw in ("v_permlane32_swap_b32", "v_permlane16_swap_b32"):
            for T in range(1, 5):
                E(f"{sw} v{Z[T] + 2}, v{Z[T] + 3}")
            for T in range(1, 5):
                E(f"v_max_f32 v{Z[T] + 2}, v{Z[T] + 2}, v{Z[T] + 3}")
            if sw.startswith("v_permlane32"):
                for T in range(1, 5):
                    E(f"v_mov_b32 v{Z[T] + 3}, v{Z[T] + 2}")
        e(f"s_mov_b32 s4, {f32(LOG2E * 20 ** -0.5)}")
        P = {T: S[T] for T in range(1, 5)}
        for t in ("v_sub_f32 v{0}, v{0}, v{1}", "v_mul_f32 v{0}, s4, v{0}", "v_exp_f32 v{0}, v{0}", "v_cvt_pk_bf16_f32 v{0}, v{0}, v{0}"):
            for T in range(1, 5):
                for k in range(2):
                    E(t.format(Z[T] + k, Z[T] + 2))
        for T in range(1, 5):
            for k in range(4):
                E(f"v_and_b32 v{P[T] + k}, v{Z[T] + (k & 1)}, v{MK + k}")
        self.stamp("att p")
        O0 = {T: 212 + 4 * (T - 1) for T in range(1, 5)}
        O1 = {T: 228 + 4 * (T - 1) for T in range(1, 5)}
        SM = {T: S[T] + 4 for T in range(1, 5)}
        for T in range(1, 5):
            self.mfma(v(SM[T], 4), v(ONE, 4), v(P[T], 4), "0")
        for T in range(1, 5):
            self.mfma(v(O0[T], 4), v(V0 + 2 * (T - 1), 4), v(P[T], 4), "0")
            self.mfma(v(O1[T], 4), v(VL + 2 * (T - 1), 4), v(P[T], 4), "0")
        msk = {2: "s[30:31]", 3: "s[32:33]", 4: "s[28:29]"}
        for T in range(1, 5):
            E(f"v_rcp_f32 v{SM[T]}, v{SM[T]}")
        for T in range(1, 5):
            for h in range(2):
                E(f"v_pk_mul_f32 {v(O0[T] + 2 * h, 2)}, {v(O0[T] + 2 * h, 2)}, {v(SM[T], 2)} op_sel_hi:[1,0]")
        OUT = 16
        self.auto(c["depth_pre_pub"])
        for T in range(1, 5):
            for h in range(2):
                E(f"v_cvt_pk_bf16_f32 v{OUT + 2 * (T - 1) + h}, v{O0[T] + 2 * h}, v{O0[T] + 2 * h + 1}")
        for T in range(2, 5):
            for r in range(4):
                E(f"v_cndmask_b32 v{O1[1] + r}, v{O1[1] + r}, v{O1[T] + r}, {msk[T]}")
            E(f"v_cndmask_b32 v{SM[1]}, v{SM[1]}, v{SM[T]}, {msk[T]}")
        for pr in range(2):
            for h in range(2):
                E(f"v_permlane32_swap_b32 v{OUT + 4 * pr + h}, v{OUT + 4 * pr + 2 + h}")
        for h in range(2):
            E(f"v_pk_mul_f32 {v(O1[1] + 2 * h, 2)}, {v(O1[1] + 2 * h, 2)}, {v(SM[1], 2)} op_sel_hi:[1,0]")
        for h in range(2):
            E(f"v_cvt_pk_bf16_f32 v{OUT + 8 + h}, v{O1[1] + 2 * h}, v{O1[1] + 2 * h + 1}")
        e(f"s_mul_i32 s4, s{sRB}, 81920")
        e(f"s_add_u32 s4, s4, {OFF_O}")
        e(f"s_lshl_b32 s5, s{sCB}, 2")
        e(f"s_add_u32 s5, s5, s{sW}")
        e("s_lshl_b32 s6, s5, 7")
        e("s_add_u32 s6, s6, s4")
        e("s_add_u32 s6, s6, 16384")
        e("s_lshl_b32 s5, s5, 9")
        e("s_add_u32 s4, s4, s5")
        e("s_add_u32 s5, s4, 40960")
        self.ws_store([("buffer_store_dwordx4", v(OUT, 4), "v39", "s4 offen"),
                       ("buffer_store_dwordx4", v(OUT + 4, 4), "v39", "s5 offen"),
                       ("buffer_store_dwordx2", v(OUT + 8, 2), "v40", "s6 offen")], through=c["o_mode"] == "sc1")
        self.stamp("att done")

    def mv_addr(self, full, half):
        e = self.e
        e(f"s_and_b32 s4, s{sCB}, 1")
        e("s_lshl_b32 s5, s4, 6")
        e(f"s_add_u32 s5, s5, {L_MV}")
        e(f"v_lshl_add_u32 v{full}, v4, 5, s5")
        e("s_xor_b32 s4, s4, 1")
        e("s_lshl_b32 s4, s4, 8")
        e(f"s_add_u32 s4, s4, {L_MV}")
        e(f"v_and_b32 v{half}, 1, v4")
        e(f"v_lshl_add_u32 v{half}, v{half}, 5, s4")
        e("v_lshrrev_b32 v15, 1, v4")
        e(f"v_lshl_add_u32 v{half}, v15, 4, v{half}")

    def mv_read(self, vec, dst, full, half):
        e = self.e
        for ct in range(4):
            e(f"ds_read_b128 {v(dst + 4 * ct, 4)}, v{full} offset:{320 * vec + 128 * (ct >> 1) + 16 * (ct & 1)}")
        e(f"ds_read_b128 {v(dst + 16, 4)}, v{half} offset:{320 * vec}")

    def unpack_res(self, dst):
        e = self.e
        for k in range(10):
            e(f"v_accvgpr_read_b32 v{dst + 2 * k + 1}, a{XRES + k}")
            e(f"v_lshlrev_b32 v{dst + 2 * k}, 16, v{dst + 2 * k + 1}")
            e(f"v_and_b32 v{dst + 2 * k + 1}, s71, v{dst + 2 * k + 1}")

    def phase2(self):
        e = self.e
        c = self.c
        A2, WB, ACC = 176, 136, 116
        XR, GA, SB, AA = 96, 76, 56, 36
        self.auto(c["depth_post_pub"])
        self.need(("mv",))
        self.mv_process()
        self.unpack_res(XR)
        self.mv_addr(9, 10)
        e(f"s_lshl_b32 s28, s{sRB}, 2")
        e(f"s_add_u32 s28, s28, s{sW}")
        e("s_mul_i32 s28, s28, 20480")
        e(f"s_add_u32 s29, s28, {OFF_H2}")
        e(f"s_add_u32 s28, s28, {OFF_O}")
        e("v_lshlrev_b32 v11, 3, v0")
        e(f"v_add_u32 v8, {L_W2}, v1")
        e(f"v_add_u32 v12, {L_W2 + 61440}, v1")
        self.group_sync(FL_S1, sRB, sCB, 8, c["s_before"], c["s_between"], "w2")
        self.stamp("sync1")
        so = Stream(e, 28)
        a2 = []
        for ks in range(20):
            def fn(q, ks=ks):
                if ks < 16:
                    e(f"buffer_load_dwordx4 {v(A2 + 4 * ks, 4)}, v1, {srd(S_WS)}, {so.off(1024 * ks)} sc1")
                else:
                    for h in range(2):
                        e(f"buffer_load_dwordx2 {v(A2 + 4 * ks + 2 * h, 2)}, v11, {srd(S_WS)}, {so.off(1024 * ks + 512 * h)} sc1", cost=(50, 500))
            a2.append((("a2", ks), False, fn))
        self.queue = a2 + self.queue
        self.pf(c["depth"])
        self.mv_read(0, GA, 9, 10)
        self.mv_read(1, SB, 9, 10)
        self.mv_read(2, AA, 9, 10)

        def rd(n):
            e(f"ds_read_b128 {v(WB + 4 * (n % 10), 4)}, v{8 if n < 60 else 12} offset:{1024 * (n % 60)}")
        for n in range(9):
            rd(n)
        self.auto(c["depth"], True)
        for ks in range(20):
            self.need(("a2", ks))
            for ct in range(5):
                n = 5 * ks + ct
                self.mfma(v(ACC + 4 * ct, 4), v(WB + 4 * (n % 10), 4), v(A2 + 4 * ks, 4), "0" if ks == 0 else None)
                if n + 9 < 100:
                    rd(n + 9)
                if n == c["k2_stop"]:
                    self.auto(None)
        self.stamp("k2 end")
        e(f"s_lshl_b32 s4, s{sRB}, 2")
        e(f"s_add_u32 s4, s4, s{sW}")
        e("s_lshl_b32 s4, s4, 11")
        e(f"s_add_u32 s30, s4, {OFF_ST}")
        e(f"s_lshl_b32 s4, s{sCB}, 8")
        e("s_add_u32 s31, s30, s4")
        e("v_lshrrev_b32 v12, 1, v4")
        e("v_lshlrev_b32 v12, 7, v12")
        e("v_lshl_add_u32 v12, v3, 3, v12")
        e("v_and_b32 v11, 1, v4")
        e("v_lshlrev_b32 v14, 31, v11")
        e("v_or_b32 v14, v14, v12")
        e("v_lshl_add_u32 v11, v11, 10, v12")
        for k in range(10):
            e(f"v_pk_fma_f32 {v(XR + 2 * k, 2)}, {v(ACC + 2 * k, 2)}, {v(GA + 2 * k, 2)}, {v(XR + 2 * k, 2)}")
        e(f"v_pk_add_f32 v[16:17], {v(XR, 2)}, {v(XR + 2, 2)}")
        e(f"v_pk_mul_f32 v[18:19], {v(XR, 2)}, {v(XR, 2)}")
        for k in range(1, 10):
            if k > 1:
                e(f"v_pk_add_f32 v[16:17], v[16:17], {v(XR + 2 * k, 2)}")
            e(f"v_pk_fma_f32 v[18:19], {v(XR + 2 * k, 2)}, {v(XR + 2 * k, 2)}, v[18:19]")
        e("v_add_f32 v16, v16, v17")
        e("v_add_f32 v18, v18, v19")
        e("v_permlane32_swap_b32 v16, v18")
        e("v_add_f32 v16, v16, v18")
        e("v_mov_b32 v18, v16")
        e("v_permlane16_swap_b32 v16, v18")
        e("v_add_f32 v16, v16, v18")
        e(f"v_mov_b32 v17, s{sN}")
        self.ws_store([("buffer_store_dwordx2", "v[16:17]", "v14", "s31 offen")])

        def ld():
            for k in range(4):
                e(f"buffer_load_dwordx2 {v(20 + 2 * k, 2)}, v11, {srd(S_WS)}, s30 offen offset:{256 * k} sc1", cost=(40, 500))

        def ck(top):
            e("v_xor_b32 v28, v21, v17")
            for k in range(1, 4):
                e(f"v_bitop3_b32 v28, v28, v{21 + 2 * k}, v17 bitop3:0xf6")
            e("v_cmp_ne_u32 vcc, 0, v28")
            e(f"s_cbranch_vccnz {top}")
        for k in range(10):
            e(f"v_cvt_pk_bf16_f32 v{GA + k}, v{XR + 2 * k}, v{XR + 2 * k + 1}")
            e(f"v_accvgpr_write_b32 a{XRES + k}, v{GA + k}")
        self.stamp("st sent")
        self.poll(ld, ck)
        e.wait_vm(0)
        self.stamp("st got")
        e.t += c["t_stat"]
        self.fill(c["e2_fill"])
        e("v_add_f32 v20, v20, v22")
        e("v_add_f32 v24, v24, v26")
        e("v_add_f32 v20, v20, v24")
        e("v_mov_b32 v21, v20")
        e("v_permlane16_swap_b32 v20, v21")
        e("v_add_f32 v20, v20, v21")
        e("v_mov_b32 v21, v20")
        e("v_permlane32_swap_b32 v20, v21")
        e(f"s_mov_b32 s4, {f32(1.0 / 640)}")
        self.finish_stats(20, 21, 22)
        for k in range(10):
            e(f"v_pk_fma_f32 {v(XR + 2 * k, 2)}, {v(XR + 2 * k, 2)}, v[22:23], v[22:23] op_sel:[0,0,1] op_sel_hi:[1,0,1]")
        for k in range(10):
            e(f"v_pk_fma_f32 {v(XR + 2 * k, 2)}, {v(XR + 2 * k, 2)}, {v(AA + 2 * k, 2)}, {v(SB + 2 * k, 2)}")
        for k in (8, 9, 0, 1, 2, 3, 4, 5, 6, 7):
            e(f"v_cvt_pk_bf16_f32 v{16 + k}, v{XR + 2 * k}, v{XR + 2 * k + 1}")
            if k >= 8:
                e(f"v_mov_b32 v{18 + k}, v{16 + k}")
        e("v_permlane32_swap_b32 v24, v26")
        e("v_permlane32_swap_b32 v25, v27")
        e(f"s_lshr_b32 s4, s{sCB}, 1")
        e("s_mul_i32 s4, s4, 5120")
        e("s_add_u32 s29, s29, s4")
        e(f"s_and_b32 s5, s{sCB}, 1")
        e("s_mul_i32 s4, s5, 3072")
        e("s_add_u32 s4, s4, s29")
        e("s_lshl_b32 s5, s5, 9")
        e("s_add_u32 s5, s5, s29")
        e("v_lshlrev_b32 v12, 26, v0")
        e(f"v_and_b32 v12, {OOB:#x}, v12")
        e("v_or_b32 v12, v12, v1")
        self.ws_store([("buffer_store_dwordx4", "v[16:19]", "v1", "s4 offen"),
                       ("buffer_store_dwordx4", "v[20:23]", "v1", "s4 offen offset:1024"),
                       ("buffer_store_dwordx4", "v[24:27]", "v12", "s5 offen offset:2048")])
        self.stamp("p2 done")

    def phase3(self):
        e = self.e
        c = self.c
        X = [16 + 4 * T for T in range(8)]
        WX = 48
        ACC = 144
        acc = {}
        n = ACC
        for t in range(4):
            for T in range(8 if t < 3 else 4):
                acc[t, T] = n
                n += 4
        spare = [("v", b) for b in range(52, 144, 4)]
        self.pool.add(spare)
        e(f"s_lshl_b32 s28, s{sPAIR}, 3")
        e(f"s_lshl_b32 s4, s{sW}, 1")
        e("s_add_u32 s28, s28, s4")
        e("s_mul_i32 s28, s28, 20480")
        e(f"s_add_u32 s28, s28, {OFF_H2}")
        e(f"s_mul_i32 s30, s{sW}, 24576")
        e(f"s_and_b32 s4, s{sW}, 1")
        e("s_mul_i32 s5, s4, 49152")
        e(f"s_add_u32 s6, s5, {L_A3}")
        e("v_add_u32 v8, s6, v1")
        e(f"s_sub_u32 s5, {L_A3 + 49152}, s5")
        e("v_add_u32 v9, s5, v1")
        e(f"s_lshr_b32 s5, s{sW}, 1")
        e("s_mul_i32 s5, s5, 20480")
        e(f"s_add_u32 s5, s5, {L_W3X}")
        e("v_add_u32 v10, s5, v1")
        self.group_sync(FL_S2, sPAIR, sM, 16, c["s_before"], c["s_between"], "w3x")
        self.stamp("sync2")
        sa = Stream(e, 28)

        def dma(ks, j):
            o = sa.off(1024 * ks)
            self.set_m0(30, L_A3 + 12288 * j + (ks % 12) // 4 * 4096)
            e(f"buffer_load_dwordx4 v{(1, 5)[j]}, {srd(S_WS)}, {o} sc1 lds", tag=("a3", ks), cost=c["c_a3"])
        bars = c["k3_bars"]
        cover = lambda ks: max(b for b in bars if b <= ks)
        w3 = [x for x in self.queue if x[0][0] == "w3"] + self.w3
        self.bulk = [x for x in self.queue if x[0][0] == "w4"] + self.bulk
        items = [(cover(ks) - 1, 0, (("a3", ks, j), False, lambda q, ks=ks, j=j: dma(ks, j))) for ks in range(20) for j in range(2)]
        items += [(x[0][1], 1, x) for x in w3]
        items.sort(key=lambda z: z[:2])
        dead = {z[2][0]: z[0] for z in items}
        self.queue = [z[2] for z in items]
        state = dict(ks=0, limit=12)
        self.gate = lambda key: key[0] != "a3" or key[1] < state["limit"]
        self.urgent = lambda key: dead[key] - state["ks"] <= c["k3_ahead"]
        self.reserve = 3 * c["k3_ahead"]

        def rd(T, ks):
            e(f"ds_read_b128 {v(X[T], 4)}, v{8 if T < 4 else 9} offset:{12288 * (T % 4) + 1024 * (ks % 12)}")

        def rdx(ks):
            e(f"ds_read_b128 {v(WX, 4)}, v10 offset:{1024 * ks}")
        self.auto(c["depth"], True)
        self.need(("a3", bars[1] - 1, 1))
        e.wait_tag(("a3", bars[1] - 1))
        e("s_barrier")
        self.stamp("a3 first")
        rdx(0)
        for T in range(8):
            rd(T, 0)
        self.auto(c["depth"], True)
        for ks in range(20):
            state["ks"] = ks
            W = [self.need(("w3", ks, t)) for t in range(3)]
            if ks + 1 in bars:
                i = bars.index(ks + 1)
                last = (bars[i + 1] if i + 1 < len(bars) else 20) - 1
                self.need(("a3", last, 1))
                e.wait_tag(("a3", last))
                e("s_barrier")
                state["limit"] = 12 + ks
            for T in range(8):
                for t in range(4):
                    if (t, T) not in acc:
                        continue
                    self.mfma(v(acc[t, T], 4), R(W[t]) if t < 3 else v(WX, 4), v(X[T], 4), "0" if ks == 0 else None)
                if ks < 19:
                    rd(T, ks + 1)
                    if T == 3:
                        rdx(ks + 1)
            for q in W:
                self.pool.release(q)
            if ks == c["touch3"]:
                self.touch3()
        self.stamp("k3 end")
        self.gate = lambda key: True
        self.urgent = lambda key: True
        self.reserve = 0
        self.auto(c["depth_pre_pub"])
        e("v_mul_u32_u24 v8, 55296, v4")
        e("v_lshl_add_u32 v8, v3, 4, v8")
        e(f"s_cmp_ge_u32 s{sM}, 12")
        e(f"s_cselect_b32 s4, {OOB:#x}, 0")
        e("v_or_b32 v9, s4, v8")
        e(f"s_mul_i32 s4, s{sPAIR}, {8 * 55296}")
        e(f"s_add_u32 s4, s4, {OFF_H}")
        e(f"s_and_b32 s5, s{sW}, 1")
        e(f"s_mul_i32 s5, s5, {4 * 55296}")
        e("s_add_u32 s28, s4, s5")
        e(f"s_sub_u32 s5, {4 * 55296}, s5")
        e("s_add_u32 s29, s4, s5")
        e(f"s_lshl_b32 s4, s{sM}, 1")
        e(f"s_lshr_b32 s5, s{sW}, 1")
        e("s_add_u32 s4, s4, s5")
        e("s_add_u32 s4, s4, 192")
        e("s_lshl_b32 s4, s4, 8")
        e("s_add_u32 s30, s28, s4")
        e(f"s_lshl_b32 s4, s{sM}, 2")
        e(f"s_add_u32 s4, s4, s{sW}")
        e("s_mul_i32 s4, s4, 768")
        e("s_add_u32 s28, s28, s4")
        e("s_add_u32 s29, s29, s4")
        sets = [(t, h) for h in range(2) for t in range(4) if (t, 4 * h) in acc]
        items = []
        for n, (t, h) in enumerate(sets):
            o = 16 + 4 * n
            for k in range(4):
                a = acc[t, 4 * h + k]
                e(f"v_pk_mul_f32 {v(a, 2)}, {v(a, 2)}, {v(a + 2, 2)}")
            for k in range(4):
                a = acc[t, 4 * h + k]
                e(f"v_cvt_pk_bf16_f32 v{o + k}, v{a}, v{a + 1}")
            if t < 3:
                items.append(("buffer_store_dwordx4", v(o, 4), "v8", f"s{28 + h} offen" + (f" offset:{256 * t}" if t else "")))
            else:
                items.append(("buffer_store_dwordx4", v(o, 4), "v9", "s30 offen"))
        for n in range(len(sets)):
            o = 16 + 4 * n
            e(f"v_permlane32_swap_b32 v{o}, v{o + 2}")
            e(f"v_permlane32_swap_b32 v{o + 1}, v{o + 3}")
        for n in range(len(sets)):
            o = 16 + 4 * n
            e(f"v_permlane16_swap_b32 v{o}, v{o + 1}")
            e(f"v_permlane16_swap_b32 v{o + 2}, v{o + 3}")
        self.ws_store(items, through=c["h_mode"] == "sc1")
        self.stamp("p3 done")

    def phase4(self):
        e = self.e
        c = self.c
        ACC = 176
        self.pool.add([("v", b) for b in range(144, 176, 4)] + [("v", 44), ("v", 48)])
        e(f"s_mul_i32 s28, s{sRB}, {4 * 55296}")
        e("s_lshl_b32 s4, s68, 10")
        e("s_add_u32 s28, s28, s4")
        e(f"s_add_u32 s28, s28, {OFF_H}")
        for T in range(4):
            e(f"s_add_u32 s4, s{sW}, {T}")
            e("s_and_b32 s4, s4, 3")
            e("s_mul_i32 s4, s4, 55296")
            e(f"v_add_u32 v{8 + T}, s4, v1")
        self.group_sync(FL_S3, sPAIR, sM, 16, c["s3_before"], c["s_between"])
        self.stamp("sync3")
        self.pool.add([("v", b) for b in range(16, 44, 4)])
        sa = Stream(e, 28)
        a4 = []
        for i in range(14):
            for T in range(4):
                def fn(q, i=i, T=T):
                    if i == 13:
                        e(f"v_or_b32 v{8 + T}, s69, v{8 + T}")
                    e(f"buffer_load_dwordx4 {R(q)}, v{8 + T}, {srd(S_WS)}, {sa.off(1024 * i)} sc1", cost=c["c_a4"])
                a4.append((("a4", i, T), True, fn))
        rest = self.queue + self.bulk
        self.queue, self.bulk = [], []
        self.model.append(("w4 left", len(rest)))
        for i in range(14):
            self.queue += [x for x in rest if x[0][1] == i] + a4[4 * i:4 * i + 4]
        self.pf(c["depth"])
        self.auto(c["depth"], True)
        for i in range(14):
            W = [self.need(("w4", i, ct)) for ct in range(5)]
            for T in range(4):
                A = self.need(("a4", i, T))
                for ct in range(5):
                    self.mfma(v(ACC + 20 * T + 4 * ct, 4), R(W[ct]), R(A), "0" if i == 0 else None)
                self.pool.release(A)
            for q in W:
                self.pool.release(q)
        self.stamp("k4 end")
        for T in range(1, 4):
            e(f"s_add_u32 s4, s{sW}, {T}")
            e("s_and_b32 s4, s4, 3")
            e("s_mul_i32 s4, s4, 15360")
            e(f"v_add_u32 v{10 + T}, s4, v1")
        e(f"s_mul_i32 s4, s{sW}, 15360")
        e("v_add_u32 v10, s4, v1")
        for T in range(1, 4):
            for ct in range(5):
                e(f"ds_write_b128 v{10 + T}, {v(ACC + 20 * T + 4 * ct, 4)} offset:{L_A + 5120 * (T - 1) + 1024 * ct}")
        XR, GB, RB = 16, 36, 56
        self.mv_addr(8, 9)
        self.mv_read(3, GB, 8, 9)
        self.unpack_res(XR)
        e("v_mul_u32_u24 v8, 1280, v3")
        e("v_and_b32 v9, 1, v4")
        e("v_lshl_add_u32 v9, v9, 4, v8")
        e("v_lshrrev_b32 v15, 1, v4")
        e("v_lshl_add_u32 v9, v15, 3, v9")
        e("v_lshl_add_u32 v8, v4, 4, v8")
        e(f"s_lshl_b32 s4, s{sRB}, 2")
        e(f"s_add_u32 s4, s4, s{sW}")
        e("s_mul_i32 s4, s4, 20480")
        e(f"s_mul_i32 s5, s{sCB}, 160")
        e("s_add_u32 s4, s4, s5")
        e(f"s_and_b32 s6, s{sCB}, 1")
        e("s_xor_b32 s5, s6, 1")
        e("s_lshl_b32 s5, s5, 7")
        e("s_add_u32 s5, s5, s4")
        e("s_lshl_b32 s6, s6, 5")
        e("s_add_u32 s4, s4, s6")
        self.stamp("red sent")
        e.barrier()
        self.stamp("red bar")
        for ct in range(5):
            for T in range(3):
                e(f"ds_read_b128 {v(RB + 12 * ct + 4 * T, 4)}, v10 offset:{L_A + 5120 * T + 1024 * ct}")
        for ct in range(5):
            r = RB + 12 * ct
            for h in range(2):
                a = ACC + 4 * ct + 2 * h
                e(f"v_pk_add_f32 {v(a, 2)}, {v(a, 2)}, {v(r + 2 * h, 2)}")
                e(f"v_pk_add_f32 {v(r + 4 + 2 * h, 2)}, {v(r + 4 + 2 * h, 2)}, {v(r + 8 + 2 * h, 2)}")
                e(f"v_pk_add_f32 {v(a, 2)}, {v(a, 2)}, {v(r + 4 + 2 * h, 2)}")
                k = 2 * ct + h
                e(f"v_pk_fma_f32 {v(a, 2)}, {v(a, 2)}, {v(GB + 2 * k, 2)}, {v(XR + 2 * k, 2)}")
                e(f"v_cvt_pk_bf16_f32 v{ACC + 20 + k}, v{a}, v{a + 1}")
            if ct == 1:
                e(f"buffer_store_dwordx4 {v(ACC + 20, 4)}, v8, {srd(S_OUT)}, s4 offen{c['out_mod']}")
            if ct == 3:
                e(f"buffer_store_dwordx4 {v(ACC + 24, 4)}, v8, {srd(S_OUT)}, s4 offen offset:64{c['out_mod']}")
            if ct == 4:
                e(f"buffer_store_dwordx2 {v(ACC + 28, 2)}, v9, {srd(S_OUT)}, s5 offen{c['out_mod']}")

    def finish(self):
        e = self.e
        e("s_lshl_b32 s4, s2, 2")
        e(f"s_add_u32 s4, s4, s{sW}")
        e("s_cmp_eq_u32 s4, 0")
        e.if_else("s_cbranch_scc0", lambda: e(f"s_atomic_swap s{sN}, s[{sFL}:{sFL + 1}], {FL_EPOCH}"))
        self.stamp("last")
        if self.c.get("stamps"):
            e.force_wait(vm=0)
            self.stamp("end")
            e("s_memrealtime s[100:101]")
            e.force_wait(lg=0)
            e("s_lshl_b32 s4, s4, 6")
            e(f"s_add_u32 s4, s4, {OFF_STAMP}")
            e("v_mov_b32 v8, 0")
            for k in range(self.nstamp):
                e(f"v_mov_b32 v9, s{STAMP0 + 2 * k}")
                e(f"buffer_store_dword v9, v8, {srd(S_WS)}, s4 offen offset:{4 * k}")
            for k in range(2):
                e(f"v_mov_b32 v9, s{98 + 2 * k}")
                e(f"buffer_store_dword v9, v8, {srd(S_WS)}, s4 offen offset:{52 + 4 * k}")
            e(f"v_mov_b32 v9, s{sFAST}")
            e(f"buffer_store_dword v9, v8, {srd(S_WS)}, s4 offen offset:60")
        e.label("L_end")
        e("s_endpgm")

    def build(self):
        stop = self.c.get("stop", 9)
        self.phase0()
        self.phase1()
        if stop >= 1:
            self.attention()
        if stop >= 2:
            self.phase2()
        if stop >= 3:
            self.phase3()
        if stop >= 4:
            self.phase4()
        self.finish()
        head = open(f"cdna_kernels/{NAME}.s.ref").read().split("\n")
        pre = [l for l in head if l.startswith(";") and "@launch" not in l]
        s = "\n".join(pre) + f"\n; @launch grid=(256,1,1) block=(256,1,1) lds={LDS_BYTES}\n"
        s += f'.amdgcn_target "amdgcn-amd-amdhsa--gfx950"\n.text\n.globl {NAME}_kernel\n.p2align 8\n.type {NAME}_kernel,@function\n{NAME}_kernel:\n'
        s += self.e.text()
        s += f""".section .rodata,"a"
.p2align 6
.amdhsa_kernel {NAME}_kernel
  .amdhsa_next_free_vgpr 512
  .amdhsa_next_free_sgpr 102
  .amdhsa_accum_offset 256
  .amdhsa_group_segment_fixed_size 0
  .amdhsa_kernarg_size 96
  .amdhsa_user_sgpr_count 2
  .amdhsa_user_sgpr_kernarg_segment_ptr 1
  .amdhsa_system_sgpr_workgroup_id_x 1
.end_amdhsa_kernel
"""
        return s


DEFAULT = dict(
    ws_base=0, out_mod="", nt="", x_nt=0, x_first=5, x_second=5, x_third=2, flag_after=6,
    order="hhxhhxhhxhhxhxhxhxhh" + "mxxxl" + "x" * 10, w1_first=6, depth_x=10,
    ap_rd=4, ap_catch=3, st_gap=1, k1_ahead=9, k1_decay=1, depth_ln=9, c_pst=(100, 700),
    touch1=6, touch3=8, touch_mod="", h_mode="sc1", o_mode="sc1",
    f3_set=1, f3_load=8, f3_check=10,
    w3_early=30, w3_pre=24, mix4=0,
    window=11, depth=9, depth_att=9, depth_pre_pub=9, depth_post_pub=9,
    c_hbm=(250, 1500), c_hbm2=(76, 900), c_w=(76, 580), c_w3=(90, 580), c_a3=(76, 500), c_a4=(76, 580), c_st=(60, 500), c_st1=(150, 1000),
    s_before=0, s3_before=2400, s_between=1500, t_flag=800, t_stat=300, k2_stop=99, e2_fill=1000,
    k3_bars=[0, 2, 4, 8, 12, 16], k3_ahead=3,
)


def generate(**kw):
    cfg = dict(DEFAULT)
    cfg.update(kw)
    g = Gen(cfg)
    return g.build(), g


if __name__ == "__main__":
    s, g = generate()
    open(f"cdna_kernels/{NAME}.s", "w").write(s)
    print("instructions", g.e.count, "nop states", g.e.nops)
    print(g.model)
```

```python
import re

REG = re.compile(r"^-?(?:abs\()?([vas])(?:(\d+)|\[(\d+):(\d+)\])\)?$")
TRANS = ("v_exp_f32", "v_log_f32", "v_rcp_f32", "v_rsq_f32", "v_sqrt_f32", "v_sin_f32", "v_cos_f32")
NO_DST = ("s_cmp", "s_cbranch", "s_branch", "s_waitcnt", "s_barrier", "s_nop", "s_endpgm", "s_sleep", "s_setprio",
          "s_bitcmp", "buffer_store", "ds_write", "global_store")
RMW = ("v_fmac", "v_dot2c", "v_permlane", "s_addk", "s_mulk", "v_writelane")


def regs_of(tok):
    tok = tok.strip()
    if tok == "vcc":
        return [("s", 106), ("s", 107)]
    if tok == "exec":
        return [("s", 126), ("s", 127)]
    if tok == "m0":
        return [("s", 124)]
    m = REG.match(tok)
    if not m:
        return []
    f = m.group(1)
    if m.group(2) is not None:
        return [(f, int(m.group(2)))]
    return [(f, i) for i in range(int(m.group(3)), int(m.group(4)) + 1)]


class Ins:
    def __init__(self, text):
        self.text = text
        parts = text.split(None, 1)
        self.op = op = parts[0]
        rest = parts[1] if len(parts) > 1 else ""
        toks = [t.strip() for t in rest.split(",")] if rest else []
        mods = ""
        ops = []
        depth_fix = []
        for t in toks:
            depth_fix.append(t)
        for i, t in enumerate(depth_fix):
            sub = t.split()
            if not sub:
                continue
            ops.append(sub[0])
            if len(sub) > 1:
                mods += " " + " ".join(sub[1:])
        self.ops = ops
        self.mods = mods
        self.lds_dma = op.startswith("buffer_load") and " lds" in (" " + text)
        self.mfma = op.startswith("v_mfma")
        self.valu = op.startswith("v_") and not self.mfma
        self.trans = op.startswith(TRANS)
        self.smem = op.startswith(("s_load", "s_atomic", "s_memtime", "s_memrealtime", "s_buffer_load"))
        self.salu = op.startswith("s_") and not self.smem
        self.vmem = op.startswith(("buffer_", "global_"))
        self.ds = op.startswith("ds_")
        self.store = op.startswith(("buffer_store", "global_store"))
        self.dpp = any(k in text for k in ("row_", "quad_perm", "wave_"))
        self.perml = op.startswith("v_permlane")
        self.rdlane = op.startswith(("v_readfirstlane", "v_readlane"))
        r = [regs_of(o) for o in ops]
        if op.startswith(NO_DST) or self.lds_dma:
            dst, src = [], sum(r, [])
        elif op.startswith("s_atomic"):
            src = sum(r, [])
            dst = r[0] if "glc" in mods else []
        elif op.startswith(("v_add_co", "v_sub_co", "v_addc_co", "v_subb_co")):
            dst, src = r[0] + r[1], sum(r[2:], [])
        elif self.perml or op.startswith("v_swap"):
            dst = r[0] + r[1]
            src = r[0] + r[1]
        else:
            dst = r[0] if r else []
            src = sum(r[1:], [])
            if op.startswith(RMW) or self.dpp:
                src = src + dst
        if self.lds_dma:
            src = src + [("s", 124)]
        if op.endswith("saveexec_b64"):
            dst = dst + [("s", 126), ("s", 127)]
        self.dst, self.src = set(dst), set(src)
        if self.mfma:
            self.mA, self.mB = set(r[1]), set(r[2])
            self.mC = set(r[3])
            self.mD = r[0]
        if self.store:
            self.sdata = set(r[0]) if op.startswith("buffer_store") else set(r[1])
            self.wide = op.endswith(("x3", "x4"))


class State:
    def __init__(self):
        self.vm = []
        self.lg = []
        self.hist = []

    def copy(self):
        s = State()
        s.vm = [list(x) for x in self.vm]
        s.lg = [list(x) for x in self.lg]
        s.hist = list(self.hist)
        return s

    def merge(self, o):
        def mg(a, b):
            d = {}
            for x in a + b:
                k = id(x[2])
                if k in d:
                    d[k][0] = min(d[k][0], x[0])
                else:
                    d[k] = list(x)
            return list(d.values())
        self.vm = mg(self.vm, o.vm)
        self.lg = mg(self.lg, o.lg)
        self.hist = self.hist + o.hist


class Emitter:
    def __init__(self):
        self.out = []
        self.st = State()
        self.nops = 0
        self.nlabel = 0
        self.count = 0
        self.t = 0
        self.mfma_free = 0
        self.valu_free = 0
        self.lds_free = 0
        self.pipe_done = 0
        self.window = 9
        self.flight = []
        self.scale = 1.0
        self.cold = []
        self.hook = None
        self.in_hook = False
        self.exec_full = True
        self.scc_dirty = False

    def backlog(self):
        self.flight = [x for x in self.flight if x > self.t]
        return len(self.flight)

    def _time(self, c, cost):
        wide = bool(re.search(r"0x[0-9a-f]{3,}|\b\d{3,}\b", c.text)) or len(c.ops) > 3 or c.op.startswith(("v_pk", "v_cvt_pk", "v_accvgpr"))
        done = 0
        if c.mfma:
            self.t = max(self.t, self.mfma_free)
            self.mfma_free = self.t + 16
            self.valu_free = self.t + 8
            self.t += 4
        elif c.valu:
            self.t = max(self.t, self.valu_free)
            if c.op.startswith("v_pk"):
                self.t = max(self.t, self.mfma_free)
            self.t += 8 if (c.trans or c.perml) else (5 if wide else 4)
        elif c.ds:
            w = c.op.startswith("ds_write")
            n = 4 if "128" in c.op or "2_b64" in c.op else (2 if "64" in c.op or "2_b32" in c.op else 1)
            busy = {4: 52, 2: 26, 1: 16}[n] if w else {4: 16, 2: 8, 1: 8}[n]
            self.t = max(self.t, self.lds_free - (0 if w else 64))
            self.lds_free = max(self.lds_free, self.t) + busy
            done = self.lds_free + 64
            self.t += 4
        elif c.vmem:
            busy, lat = cost or (76, 500)
            busy, lat = int(busy * self.scale), int(lat * self.scale)
            if self.backlog() >= self.window:
                self.t = self.flight[-self.window]
            self.backlog()
            start = self.flight[-7] if len(self.flight) >= 7 else self.t
            self.pipe_done = max(self.pipe_done + busy, start + lat)
            done = self.pipe_done
            self.flight.append(done)
            self.t += 4
        elif c.smem:
            done = self.t + (700 if "glc" in c.mods or c.op.startswith("s_atomic") else 300)
            self.t += 4
        elif c.op == "s_nop":
            self.t += 4 * (int(c.ops[0]) + 1)
        else:
            self.t += 4
        return done

    def raw(self, text):
        self.out.append(text)

    def comment(self, text):
        self.out.append("    ; " + text)

    def _advance(self, n, ins=None):
        self.st.hist = [(d + n, i) for d, i in self.st.hist if d + n < 24]
        if ins is not None:
            self.st.hist.append((0, ins))

    def _put(self, text, states=1, ins=None):
        self.out.append("    " + text)
        self.count += 1
        self._advance(states, ins)

    def _wait(self, vm=None, lg=None):
        parts = []
        if vm is not None:
            vm = min(vm, 63)
            parts.append(f"vmcnt({vm})")
            self.t = max([self.t] + [x[3] for x in self.st.vm if x[0] >= vm])
            self.st.vm = [x for x in self.st.vm if x[0] < vm]
        if lg is not None:
            lg = min(lg, 15)
            parts.append(f"lgkmcnt({lg})")
            self.t = max([self.t] + [x[4] for x in self.st.lg if not (x[0] < lg if not x[3] else lg > 0)])
            self.st.lg = [x for x in self.st.lg if (x[0] < lg if not x[3] else lg > 0)]
        if parts:
            self._put("s_waitcnt " + " ".join(parts))
            self.t += 4

    def _topup(self, ages):
        if ages and self.hook and not self.in_hook and self.exec_full:
            self.in_hook = True
            self.hook(min(ages))
            self.in_hook = False

    def wait_tag(self, *tags):
        self._topup([x[0] for x in self.st.vm if x[1] in tags and x[3] > self.t])
        vm = [x[0] for x in self.st.vm if x[1] in tags]
        lg = [0 if x[3] else x[0] for x in self.st.lg if x[1] in tags]
        self._wait(min(vm) if vm else None, min(lg) if lg else None)

    def wait_regs(self, toks):
        regs = set(sum((regs_of(t) for t in toks), []))
        self._topup([x[0] for x in self.st.vm if x[2] & regs and x[3] > self.t])
        vm = [x[0] for x in self.st.vm if x[2] & regs]
        lg = [0 if x[3] else x[0] for x in self.st.lg if x[2] & regs]
        self._wait(min(vm) if vm else None, min(lg) if lg else None)

    def wait_vm(self, n=0):
        if any(x[0] >= n for x in self.st.vm):
            self._wait(vm=n)

    def wait_lg(self):
        if self.st.lg:
            self._wait(lg=0)

    def wait_ds(self):
        if any(not x[3] for x in self.st.lg):
            self._wait(lg=0)

    def force_wait(self, vm=None, lg=None):
        self._wait(vm, lg)

    def _need(self, c):
        need = 0
        cv = {r for r in c.src if r[0] in "va"}
        cs = {r for r in c.src if r[0] == "s"}
        cd = {r for r in c.dst if r[0] in "va"}
        for d, p in self.st.hist:
            w = 0
            pv = {r for r in p.dst if r[0] in "va"}
            ps = {r for r in p.dst if r[0] == "s"}
            if p.valu:
                if c.mfma and pv & cv:
                    w = max(w, 2)
                if (c.perml or c.dpp) and pv & cv:
                    w = max(w, 2)
                if c.rdlane and pv & cv:
                    w = max(w, 1)
                if p.trans and (c.valu and not c.trans) and pv & cv:
                    w = max(w, 1)
                if ps & cs:
                    if c.valu:
                        w = max(w, 4 if c.op.startswith(("v_readlane", "v_writelane")) else 2)
                    if c.vmem:
                        w = max(w, 5)
            if p.mfma:
                D = set(p.mD)
                if c.mfma:
                    if D & (c.mA | c.mB):
                        w = max(w, 8)
                    if D & c.mC and D != c.mC:
                        w = max(w, 6)
                    if D & set(c.mD) and D != c.mC:
                        w = max(w, 6)
                else:
                    if D & (cv | cd):
                        w = max(w, 8)
                    if c.valu and p.mC & cd:
                        w = max(w, 3)
            if p.salu and ("s", 124) in p.dst and c.lds_dma:
                w = max(w, 1)
            if p.store and p.wide and p.sdata & cd:
                w = max(w, 2 if c.valu else 1)
            if w - d > need:
                need = w - d
        return need

    def __call__(self, text, tag=None, cost=None):
        if "\n" in text:
            h, self.hook = self.hook, None
            for t in text.split("\n"):
                if t.strip():
                    self(t.strip(), tag, cost)
            self.hook = h
            return
        c = Ins(text)
        if c.salu:
            if c.op.startswith(("s_cselect", "s_cbranch_scc", "s_addc", "s_subb")) and not self.in_hook:
                assert not self.scc_dirty, "SCC overwritten by a prefetch before: " + text
            if c.op.startswith(("s_add", "s_sub", "s_cmp", "s_and", "s_or", "s_xor", "s_lsh", "s_max", "s_min", "s_bitcmp", "s_bfe")):
                self.scc_dirty = self.in_hook
            if c.ops and c.ops[0] in ("exec", "exec_hi", "exec_lo"):
                self.exec_full = c.op.startswith("s_mov") and c.ops[1] == "-1"
        touched = c.src | c.dst
        self._topup([x[0] for x in self.st.vm if x[2] & touched and x[3] > self.t])
        vm = [x[0] for x in self.st.vm if x[2] & touched]
        lg = [0 if x[3] else x[0] for x in self.st.lg if x[2] & touched]
        if vm or lg:
            self._wait(min(vm) if vm else None, min(lg) if lg else None)
        need = self._need(c)
        if need > 0:
            self._put(f"s_nop {need - 1}", states=need)
            self.nops += need
            self.t += 4 * need
        states = 1
        if c.op == "s_nop":
            states = int(c.ops[0]) + 1
        self._put(text, states=states, ins=c)
        done = self._time(c, cost)
        if c.vmem:
            for x in self.st.vm:
                x[0] += 1
            self.st.vm.append([0, tag, set(c.dst), done])
        if c.ds:
            for x in self.st.lg:
                x[0] += 1
            self.st.lg.append([0, tag, set(c.dst), False, done])
        if c.smem:
            self.st.lg.append([0, tag, set(c.dst), True, done])
        if self.hook and not self.in_hook and self.exec_full and (c.mfma or c.valu or c.ds):
            self.in_hook = True
            self.hook(c)
            self.in_hook = False

    def barrier(self):
        self.wait_ds()
        self("s_barrier")

    def new_label(self, base):
        self.nlabel += 1
        return f"L_{base}_{self.nlabel}"

    def label(self, name):
        self.out.append(name + ":")

    def if_else(self, cond_branch_to_else, then_fn, else_fn=None):
        le, lj = self.new_label("else"), self.new_label("join")
        h, self.hook = self.hook, None
        self(f"{cond_branch_to_else} {le}")
        s0 = self.st.copy()
        t0 = self.clock()
        then_fn()
        if else_fn is None:
            self.label(le)
            self.st.merge(s0)
        else:
            self(f"s_branch {lj}")
            s1, t1 = self.st, self.clock()
            self.st = s0
            self.set_clock(t0)
            self.label(le)
            else_fn()
            self.label(lj)
            self.st.merge(s1)
            self.set_clock([max(a, b, key=lambda z: len(z) if isinstance(z, list) else z) for a, b in zip(t1, self.clock())])
        self.hook = h

    def rare(self, label, then_fn, cold_fn):
        lj = self.new_label("back")
        h, self.hook = self.hook, None
        s0, t0 = self.st.copy(), self.clock()
        main, self.out = self.out, []
        self.label(label)
        cold_fn()
        self(f"s_branch {lj}")
        self.cold += self.out
        self.out = main
        s1, self.st = self.st, s0
        self.set_clock(t0)
        if then_fn:
            then_fn()
        self.label(lj)
        self.st.merge(s1)
        self.hook = h

    def clock(self):
        return [self.t, self.mfma_free, self.valu_free, self.lds_free, self.pipe_done, list(self.flight)]

    def set_clock(self, c):
        self.t, self.mfma_free, self.valu_free, self.lds_free, self.pipe_done, self.flight = c

    def text(self):
        return "\n".join(self.out + self.cold) + "\n"
```

```python
import re
import sys
sys.path.insert(0, "tools")
from emit import Emitter

NAME = "adaLN_cond__sliding_local_dilated__glu_gated_bilinear__prompt"

OFF_W1P, OFF_W2P, OFF_W3P, OFF_W4P = 0, 0x260000, 0x330000, 0x770000
OFF_O, OFF_H = 0x990000, 0xE90000
OFF_H2 = OFF_O
OFF_ST, OFF_MOD, OFF_FLG = 0x1550000, 0x1590000, 0x15A0000
FL_EPOCH, FL_F1, FL_F3 = 0, 0x1000, 0x9000
FL_S1, FL_S2, FL_S3 = 0x10000, 0x30000, 0x40000
NREP = 32
OFF_LN = 0x15F0000
OFF_STAMP = 0x1600000
WS_USED = 0x1620000
OOB = 0x80000000

L_A = 0
L_JOB = 102400
L_PACK = 122880
L_W3X = 0
L_W2 = 40960
L_A3 = 40960
L_ATT = 143360
L_MV = 153600
L_MISC = 155648
L_SILU = L_MISC
L_STAT = L_MISC + 512
L_AS = L_MISC + 3072
L_RS = L_MISC + 5632
L_SP = L_MISC + 5952
LDS_BYTES = 163840

S_X, S_WS, S_A, S_B, S_OUT = 8, 12, 16, 20, 24
P_X, P_WQKV, P_WO, P_WG, P_WU, P_WD, P_C, P_WMOD, P_OUT, P_WS = 28, 30, 32, 36, 38, 40, 42, 44, 46, 50
sW, sCB, sRB, sM, sPAIR, sXCD, sN, sFAST = 52, 53, 54, 55, 56, 57, 58, 59
sJK, sJC = 60, 61
sFL = 34
sMY = 63
sPOLL = 72
STAMP0 = 80
XRES = 244
S_C = 48
sPK = 28
sPD, sSS, sSD = 36, 44, 45

LOG2E = 1.4426950408889634


def f32(x):
    import struct
    return "0x%08x" % struct.unpack("<I", struct.pack("<f", x))[0]


def srd(n):
    return f"s[{n}:{n + 3}]"


def R(q, n=4, o=0):
    f, b = q
    return f"{f}[{b + o}:{b + o + n - 1}]" if n > 1 else f"{f}{b + o}"


def v(b, n=1):
    return R(("v", b), n)


class Pool:
    def __init__(self, quads):
        self.free = list(quads)

    def alloc(self):
        return self.free.pop(0)

    def release(self, q):
        assert q not in self.free
        self.free.append(q)

    def add(self, quads):
        for q in quads:
            self.release(q)

    def take(self, quads):
        for q in quads:
            self.free.remove(q)


class Stream:
    def __init__(self, e, sreg):
        self.e, self.s, self.cur = e, sreg, 0

    def off(self, byte):
        blk = byte // 4096 * 4096
        if blk != self.cur:
            self.e(f"s_add_u32 s{self.s}, s{self.s}, {blk - self.cur}" if blk > self.cur else
                   f"s_sub_u32 s{self.s}, s{self.s}, {self.cur - blk}")
            self.cur = blk
        imm = byte - blk
        return f"s{self.s} offen" + (f" offset:{imm}" if imm else "")


class Gen:
    def __init__(self, cfg):
        self.c = cfg
        self.e = Emitter()
        self.e.window = cfg["window"]
        self.nstamp = 0
        self.stamp_names = []
        self.pool = Pool([("a", 4 * i) for i in range(61)])
        self.queue = []
        self.loc = {}
        self.xn = 0
        self.skip = False
        self.soon = lambda key: True
        self.ntouch = 0
        self.m0 = None
        self.reserve = 0
        self.hold = 18
        self.last_pf = False
        self.gate = lambda key: True
        self.model = []
        self.issued = {}
        self.kinds = {}

    def stamp(self, name):
        self.model.append((name, self.e.t))
        self.issued[name] = (dict(self.kinds), len(self.pool.free), self.e.count)
        d = self.c.get("diag_hold")
        if d and name == "start":
            self.e("s_memrealtime s[96:97]")
        if d and d[0] == name:
            lab = self.e.new_label("hold")
            self.e.force_wait(lg=0)
            self.e.label(lab)
            self.e("s_memrealtime s[94:95]")
            self.e("s_sub_u32 s94, s94, s96")
            self.e(f"s_cmp_lt_u32 s94, {d[1] * 100}")
            self.e(f"s_cbranch_scc1 {lab}")
        if name not in (self.c.get("stamps") or ()):
            return
        r = STAMP0 + 2 * self.nstamp
        assert r + 1 <= 97
        self.e(f"{'s_memrealtime' if self.c.get('rt') else 's_memtime'} s[{r}:{r + 1}]")
        self.nstamp += 1
        self.stamp_names.append(name)

    def _issue(self, k=0):
        key, needs, fn = self.queue.pop(k)
        q = self.pool.alloc() if needs else None
        was, self.e.in_hook = self.e.in_hook, True
        fn(q)
        self.e.in_hook = was
        self.loc[key] = q
        self.kinds[key[0]] = self.kinds.get(key[0], 0) + 1

    def _pick(self):
        for strict in (True, False):
            for k, (key, needs, _) in enumerate(self.queue):
                room = self.reserve if key[0] == "w4" and k else self.hold
                if self.gate(key) and (not needs or len(self.pool.free) > room) and (not strict or self.soon(key)):
                    return k
                if not self.skip:
                    break
        return None

    def pf(self, n=1):
        for done in range(n):
            k = self._pick()
            if k is None:
                return done
            self._issue(k)
        return max(n, 0)

    def need(self, key):
        while key not in self.loc:
            k = next(k for k, x in enumerate(self.queue) if self.gate(x[0]))
            assert (k == 0 or self.skip) and self.gate(key) and (self.pool.free or not self.queue[k][1]), f"cannot issue {key}"
            self._issue(k)
        return self.loc[key]

    def auto(self, depth, mfma_only=False, ahead=None):
        if depth is None:
            self.e.hook = None
            return

        def hook(c):
            if isinstance(c, int):
                self.pf((ahead or depth) - c)
                return
            self.last_pf = False
            if mfma_only and not c.mfma:
                return
            if self.e.backlog() < depth:
                self.last_pf = self.pf(1) > 0
        self.e.hook = hook

    def fill(self, until):
        t0 = self.e.t
        while self.e.pipe_done < t0 + until and self.pf(1):
            pass

    def set_m0(self, sreg, off):
        if self.m0 != (sreg, off):
            self.e(f"s_add_u32 m0, s{sreg}, {off}")
            self.m0 = (sreg, off)

    def mfma(self, d, a, b, c=None):
        self.e(f"v_mfma_f32_16x16x32_bf16 {d}, {a}, {b}, {d if c is None else c}")

    @staticmethod
    def gap_cost(t):
        if t is None:
            return 12
        if callable(t):
            return 6
        n = 0
        for x in (t[0] if isinstance(t, tuple) else t).split("\n"):
            n += 4 if x.startswith("s_") else 12 if x.startswith(("v_permlane", "v_rcp", "v_mfma", "buffer_store", "ds_write")) else 6
        return n

    def kmfma(self, d, a, b, c, side, busy):
        h = self.e.hook
        if busy:
            self.e.hook = h and (lambda x: h(x) if isinstance(x, int) else None)
        self.last_pf = False
        self.mfma(d, a, b, c)
        self.e.hook = h
        if busy or self.last_pf:
            return
        left = self.c["gap"]
        while side and (left == self.c["gap"] or self.gap_cost(side[0]) <= left):
            left -= self.gap_cost(side[0])
            self.run(side)

    def poll(self, load, check):
        e = self.e
        top, done = e.new_label("poll"), e.new_label("pdone")
        h, e.hook = e.hook, None
        e.wait_lg()
        e("s_mov_b32 s3, 0")
        e.label(top)
        e("s_add_u32 s3, s3, 1")
        e("s_cmp_gt_u32 s3, 0x20000")
        e(f"s_cbranch_scc1 {done}")
        load()
        check(top)
        e.label(done)
        e.hook = h

    def check_or_spin(self, check, load):
        e = self.e
        again = e.new_label("retry")
        h, e.hook = e.hook, None
        check(again)
        e.rare(again, None, lambda: self.poll(load, check))
        e.hook = h

    def ws_store(self, items, tag="pub", through=False):
        e = self.e
        if through:
            for op, data, voff, rest in items:
                e(f"{op} {data}, {voff}, {srd(S_WS)}, {rest} sc1", tag=tag, cost=self.c["c_st1"])
            return
        e(f"s_cmp_eq_u32 s{sFAST}, 1")

        def variant(mod):
            def f():
                for op, data, voff, rest in items:
                    e(f"{op} {data}, {voff}, {srd(S_WS)}, {rest}{mod}", tag=tag, cost=self.c["c_st"])
            return f
        slow = e.new_label("slow")
        e(f"s_cbranch_scc0 {slow}")
        e.rare(slow, variant(""), variant(" sc1"))

    def group_sync(self, fl_off, idx_reg, mem_reg, members, before, between, extra=None):
        e = self.e
        self.auto(None)
        self.fill(before)
        e(f"s_lshl_b32 s4, s{idx_reg}, 12")
        e(f"s_add_u32 s4, s4, {fl_off}")
        e(f"s_lshl_b32 s5, s{mem_reg}, 2")
        e("s_add_u32 s5, s5, s4")
        e(f"s_add_u32 s5, s5, {OFF_FLG}")
        e("v_lshlrev_b32 v14, 7, v0")
        e(f"v_mov_b32 v15, s{sN}")
        e(f"s_mov_b32 s6, s{sN}")
        e(f"s_mov_b32 s7, s{sN}")
        self.stamp(f"pre{fl_off:x}")
        e.wait_tag("pub")
        e.barrier()
        self.stamp(f"drained{fl_off:x}")
        e(f"s_cmp_eq_u32 s{sW}, 0")

        def signal():
            e("s_mov_b32 exec_hi, 0")
            self.ws_store([("buffer_store_dword", "v15", "v14", "s5 offen")], tag=None)
            e("s_mov_b32 exec_hi, -1")
        e.if_else("s_cbranch_scc0", signal)
        t0 = e.t
        while extra and any(k[0][0] == extra for k in self.queue):
            self._issue()
        self.fill(between - (e.t - t0))
        self.stamp(f"filled{fl_off:x}")
        e(f"s_cmp_eq_u32 s{sW}, 0")

        def spin():
            dst = f"s[36:{36 + members - 1}]"

            def ld():
                e(f"s_cmp_lt_u32 s3, {NREP}")

                def fresh():
                    e(f"s_load_dwordx{members} {dst}, s[{sFL}:{sFL + 1}], s4")
                    e("s_add_u32 s4, s4, 128")
                e.if_else("s_cbranch_scc0", fresh, lambda: e(f"s_load_dwordx{members} {dst}, s[{sFL}:{sFL + 1}], s4 glc"))

            def ck(top):
                for k in range(0, members, 2):
                    e(f"s_cmp_lg_u64 s[{36 + k}:{37 + k}], s[6:7]")
                    e(f"s_cbranch_scc1 {top}")
            self.poll(ld, ck)
        e.if_else("s_cbranch_scc0", spin)
        self.stamp(f"polled{fl_off:x}")
        e.t = max(e.t, t0 + self.c["t_flag"])
        if extra:
            e.wait_tag(extra)
        e.barrier()

    def make_srd(self, sr, p, n):
        e = self.e
        e(f"s_mov_b32 s{sr}, s{p}")
        e(f"s_mov_b32 s{sr + 1}, s{p + 1}")
        e(f"s_mov_b32 s{sr + 2}, {n}")
        e(f"s_mov_b32 s{sr + 3}, 0x20000")

    def slab_offsets(self, sigma_off, src, dst):
        e = self.e
        e(f"s_cmp_lt_u32 s2, {sigma_off[0]}")
        e(f"s_cselect_b32 s4, {sigma_off[1]}, {sigma_off[2]}")
        e("s_sub_u32 s4, s2, s4")
        e("s_lshr_b32 s5, s4, 2")
        e("s_and_b32 s4, s4, 3")
        if src:
            e(f"s_mul_i32 s6, s4, {160 * 7680}")
            e("s_lshl_b32 s7, s5, 7")
            e("s_add_u32 s6, s6, s7")
            e(f"s_mul_i32 s7, s{sW}, {8 * 7680}")
            e(f"s_add_u32 s{src}, s6, s7")
        if dst:
            e("s_mul_i32 s4, s4, 15360")
            e("s_lshl_b32 s5, s5, 8")
            e("s_add_u32 s4, s4, s5")
            e(f"s_lshl_b32 s5, s{sW}, 6")
            e("s_add_u32 s4, s4, s5")
            e(f"s_add_u32 s{dst}, s4, {OFF_MOD}")

    def slab_load(self, i, src, voff):
        e = self.e
        e(f"s_lshl_b32 m0, s{sW}, 10")
        e(f"s_add_u32 m0, m0, {L_JOB + 4096 * i}")
        if i:
            e(f"s_add_u32 s{src}, s{src}, {32 * 7680}")
        e(f"buffer_load_dwordx4 v{voff}, {srd(S_B)}, s{src} offen{self.c['nt']} lds", tag="job", cost=self.c["c_hbm2"])

    def slab_steps(self, dst, a, b, vst, d):
        qa = [self.pool.alloc() for _ in range(5)]
        qb = [self.pool.alloc() for _ in range(5)]
        L = []
        for k in range(5):
            L.append(f"ds_read_b64_tr_b16 {R(qa[k], 2)}, v{a} offset:{4096 * k}")
            L.append(f"ds_read_b64_tr_b16 {R(qa[k], 2, 2)}, v{a} offset:{4096 * k + 2048}")
            L.append(f"ds_read2_b64 {R(qb[k])}, v{b} offset0:{8 * k} offset1:{8 * k + 4}")
        L.append(f"v_mov_b32 v{d + 4}, 0xff")
        M = [f"v_mfma_f32_16x16x32_bf16 {v(d, 4)}, {R(qa[k])}, {R(qb[k])}, {v(d, 4) if k else 0}" for k in range(5)]
        F = [f"v_add_u32 v{d + r}, 0x80, v{d + r}" for r in range(4)]
        F += [f"v_bfi_b32 v{d + r}, v{d + 4}, s{sN}, v{d + r}" for r in range(4)]
        F.append((f"buffer_store_dwordx4 {v(d, 4)}, v{vst}, {srd(S_WS)}, s{dst} offen sc1", "slabst"))
        return L, M, F, qa + qb

    def code_touch(self, first_kb, lines, tid, dst):
        self.ntouch += 1
        here = f"L_pc{self.ntouch}"
        return [lambda: (self.e("s_getpc_b64 s[4:5]"), self.e.label(here)), f"s_sub_u32 s4, s4, {here}-L_begin\ns_subb_u32 s5, s5, 0",
                "s_mov_b32 s6, L_last-L_begin", "s_mov_b32 s7, 0x20000", "s_lshr_b32 s3, s2, 3", "s_lshl_b32 s3, s3, 7",
                f"s_add_u32 s3, s3, {first_kb * 1024}", f"v_min_u32 v{dst}, {lines // 2 - 1}, {tid}", f"v_lshlrev_b32 v{dst}, 12, v{dst}",
                f"v_add_u32 v{dst}, s3, v{dst}", (f"buffer_load_dword v{dst}, v{dst}, s[4:7], 0 offen", None, (40, 900))]

    def prologue(self):
        e = self.e
        c = self.c
        e.label("L_begin")
        self.stamp("start")
        if c.get("stamps"):
            e("s_memrealtime s[98:99]")
        e("s_cmp_ge_u32 s2, 256")
        e("s_cbranch_scc1 L_end")
        e("s_load_dwordx16 s[28:43], s[0:1], 0")
        e("s_load_dwordx8 s[44:51], s[0:1], 64")
        self.run(self.code_touch(0, 32, "v0", 95), 99)
        e("v_lshrrev_b32 v2, 6, v0")
        e("v_mov_b32 v15, v0")
        e(f"v_readfirstlane_b32 s{sW}, v2")
        e("v_and_b32 v0, 63, v0")
        e(f"s_and_b32 s{sXCD}, s2, 7")
        e("s_lshr_b32 s3, s2, 3")
        e(f"s_mul_i32 s4, s{sXCD}, 20")
        e("s_add_u32 s4, s4, s3")
        e("s_sub_u32 s4, s4, 10")
        e(f"s_lshr_b32 s{sJK}, s4, 3")
        e(f"s_and_b32 s{sJC}, s4, 7")
        e("v_lshrrev_b32 v5, 3, v0")
        e("v_and_b32 v6, 6, v5")
        e("v_xor_b32 v6, v6, v0")
        e("v_and_b32 v6, 7, v6")
        e("v_lshlrev_b32 v6, 4, v6")
        e(f"v_mov_b32 v7, {OOB:#x}")
        e("v_mul_u32_u24 v20, 7680, v5")
        e("v_add_u32 v20, v20, v6")
        e("v_lshrrev_b32 v8, 5, v15")
        e("v_lshlrev_b32 v9, 1, v8")
        e("v_sub_u32 v9, v15, v9")
        e("v_and_b32 v9, 31, v9")
        e("v_cmp_gt_u32 vcc, 30, v9")
        e("v_mul_u32_u24 v10, 26, v9")
        e("v_lshrrev_b32 v10, 8, v10")
        e("v_mul_u32_u24 v10, 1120, v10")
        e("v_mul_u32_u24 v8, 3840, v8")
        e("v_lshl_add_u32 v8, v9, 4, v8")
        e("v_add_u32 v8, v8, v10")
        e("v_cndmask_b32 v16, v7, v8, vcc")
        self.slab_offsets((80, 0, 160), 64, None)
        e(f"s_mul_i32 s4, s{sJK}, {32 * 3840}")
        e(f"s_mul_i32 s5, s{sJC}, 160")
        e("s_add_u32 s4, s4, s5")
        e(f"s_lshl_b32 s5, s{sW}, 10")
        e(f"s_mov_b32 s65, {32 * 7680}")
        e(f"s_mov_b32 s{S_A + 2}, 4915200")
        e(f"s_mov_b32 s{S_A + 3}, 0x20000")
        e("s_sub_u32 s6, s2, 80")
        e("s_cmp_lt_u32 s6, 160")
        e("s_cselect_b64 vcc, -1, 0")
        e("s_cselect_b32 s64, s4, s64")
        e(f"s_cselect_b32 s65, {8 * 3840}, s65")
        e(f"s_cselect_b32 s{S_A + 2}, 2457600, s{S_A + 2}")
        e("v_cndmask_b32 v16, v20, v16, vcc")
        e("v_cndmask_b32 v17, v20, v7, vcc")
        e(f"s_cselect_b64 s[{S_A}:{S_A + 1}], s[{P_WQKV}:{P_WQKV + 1}], s[{P_WMOD}:{P_WMOD + 1}]")
        for i in range(5):
            e(f"s_add_u32 m0, s5, {L_JOB + 4096 * i}")
            if i:
                e("s_add_u32 s64, s64, s65")
            e(f"buffer_load_dwordx4 v{16 if i < 4 else 17}, {srd(S_A)}, s64 offen{c['nt']} lds", tag="job", cost=c["c_hbm"])
        self.stamp("job issued")
        e(f"s_and_b32 s{sCB}, s3, 7")
        e(f"s_and_b32 s{sM}, s3, 15")
        e("s_lshr_b32 s3, s3, 3")
        e(f"s_lshl_b32 s{sRB}, s{sXCD}, 2")
        e(f"s_add_u32 s{sRB}, s{sRB}, s3")
        e(f"s_lshr_b32 s{sPAIR}, s{sRB}, 1")
        e("s_and_b32 s4, s2, 3")
        e("s_mul_i32 s4, s4, 160")
        e("v_add_u32 v22, s4, v15")
        e("v_min_u32 v22, 639, v22")
        e("v_lshlrev_b32 v22, 1, v22")
        e(f"global_load_ushort v23, v22, s[{P_C}:{P_C + 1}]")
        if c["ws_base"]:
            e(f"s_add_u32 s{P_WS}, s{P_WS}, {c['ws_base']}")
            e(f"s_addc_u32 s{P_WS + 1}, s{P_WS + 1}, 0")
        e(f"s_add_u32 s{sFL}, s{P_WS}, {OFF_FLG}")
        e(f"s_addc_u32 s{sFL + 1}, s{P_WS + 1}, 0")
        e(f"s_load_dword s{sN}, s[{sFL}:{sFL + 1}], {FL_EPOCH}")
        e("v_mul_u32_u24 v93, 1280, v5")
        e("v_add_u32 v93, v93, v6")
        self.x_setup()
        self.make_srd(S_X, P_X, 2621440)
        self.x_issue(c["x_first"])
        self.stamp("w0 issued")
        e("v_lshlrev_b32 v1, 4, v0")
        e("v_and_b32 v3, 15, v0")
        e("v_lshrrev_b32 v4, 4, v0")
        self.make_srd(S_WS, P_WS, WS_USED)
        self.make_srd(S_OUT, P_OUT, 2621440)
        self.make_srd(S_B, P_WMOD, 4915200)
        e("s_lshl_b32 s64, s2, 2")
        e(f"s_add_u32 s64, s64, s{sW}")

    def shadow(self):
        e = self.e
        e("v_mul_u32_u24 v2, 12, v4")
        e("v_add_lshl_u32 v2, v2, v3, 4")
        e("v_cmp_gt_u32 vcc, 12, v3")
        e(f"s_getreg_b32 s{sMY}, hwreg(HW_REG_XCC_ID)")
        e(f"s_and_b32 s{sMY}, s{sMY}, 7")
        e("v_cndmask_b32 v2, v7, v2, vcc")
        self.slab_offsets((80, 0, 160), None, 62)
        e(f"s_lshl_b32 s4, s{sJC}, 2")
        e(f"s_add_u32 s4, s4, s{sW}")
        e("s_mul_i32 s4, s4, 20")
        e(f"s_add_u32 s4, s4, s{sJK}")
        e("s_mul_i32 s4, s4, 3840")
        if OFF_W1P:
            e(f"s_add_u32 s4, s4, {OFF_W1P}")
        e("s_sub_u32 s3, s2, 80\ns_cmp_lt_u32 s3, 160\ns_cselect_b32 s62, s4, s62")
        e("v_and_b32 v8, 3, v0")
        e("v_bfe_u32 v9, v0, 2, 2")
        e("v_lshl_add_u32 v10, v4, 3, v9")
        e("v_lshlrev_b32 v10, 9, v10")
        e(f"v_add_u32 v10, {L_JOB}, v10")
        e(f"s_mul_i32 s4, s{sW}, 40")
        e("v_lshl_add_u32 v9, v9, 5, s4")
        e("v_min_u32 v11, 2, v8")
        e("v_mul_u32_u24 v11, 160, v11")
        e("v_add_u32 v11, v11, v9")
        e("v_lshl_add_u32 v9, v8, 3, v9")
        e("s_movk_i32 s4, 0x1ff")
        for p in range(4):
            for h in range(2):
                e(f"v_add_u32 v12, {(160 * p if p < 3 else 32) + 128 * h}, v{9 if p < 3 else 11}")
                e(f"v_and_or_b32 v{140 + 2 * p + h}, v12, s4, v10")
        e("v_lshrrev_b32 v9, 2, v0")
        e("v_and_b32 v10, 6, v9")
        e("v_lshlrev_b32 v10, 4, v10")
        e("v_lshlrev_b32 v9, 7, v9")
        e(f"s_lshl_b32 s4, s{sW}, 5")
        e("v_lshl_add_u32 v67, v8, 3, s4")
        e("v_xor_b32 v67, v67, v10")
        e("v_add_u32 v67, v67, v9")
        e(f"v_add_u32 v67, {L_JOB}, v67")
        e("v_lshlrev_b32 v68, 3, v4")
        e(f"v_add_u32 v68, {L_SILU}, v68")
        e("v_cmp_eq_u32 vcc, 0, v3")
        e("s_sub_u32 s4, s2, 116")
        e("s_cmp_ge_u32 s4, 112")
        e(f"s_cselect_b32 s4, 0, {OOB:#x}")
        e("v_cndmask_b32 v69, v7, v0, vcc")
        e("v_or_b32 v70, s4, v69")
        e("v_or_b32 v71, s4, v20")

    def descriptors(self):
        h, self.e.hook = self.e.hook, None
        real = self.e

        def e(t, **kw):
            real(re.sub(r"\bv(8|9|10|11|12|13|14)\b", lambda m: f"v{int(m.group(1)) + 40}", t), **kw)
        e.if_else = real.if_else
        e("v_and_b32 v8, 3, v0")
        e("v_lshrrev_b32 v9, 2, v0")
        e("v_and_b32 v10, 6, v9")
        e("v_lshlrev_b32 v10, 4, v10")
        e(f"s_lshl_b32 s65, s{sW}, 13")
        e(f"s_add_u32 s65, s65, {L_PACK}")
        e("v_lshl_add_u32 v9, v9, 7, s65")
        e("v_lshrrev_b32 v11, 5, v0")
        e("v_and_b32 v12, 3, v5")

        def w3():
            self.make_srd(S_A, P_WG, 2211840)
            self.make_srd(S_C, P_WU, 2211840)
            e(f"s_mul_hi_u32 s4, s64, {((1 << 32) + 26) // 27}")
            e("s_mul_i32 s5, s4, 27")
            e("s_sub_u32 s5, s64, s5")
            e(f"s_mul_i32 s6, s4, {32 * 3456}")
            e("s_lshl_b32 s7, s5, 7")
            for u in range(2):
                e(f"s_add_u32 s{sPK + 3 * u}, s6, s7")
                e(f"s_mov_b32 s{sPK + 3 * u + 1}, {16 * 3456}")
                e(f"s_mov_b32 s{sPK + 3 * u + 2}, {4 * 3456}")
            e("s_mul_i32 s5, s5, 160")
            e("s_add_u32 s4, s4, s5")
            e("s_lshl_b32 s4, s4, 10")
            for t in range(8):
                e(f"s_add_u32 s{sPD + t}, s4, {OFF_W3P + 20480 * t}")
            e("v_lshl_add_u32 v65, v11, 3, v12")
            e("v_mul_u32_u24 v65, 3456, v65")
            e("v_add_u32 v65, v65, v6")
            e("v_mov_b32 v66, v65")
            e("v_and_b32 v13, 1, v8")
            e("v_lshl_add_u32 v9, v13, 12, v9")
            e("v_lshrrev_b32 v13, 1, v8")
            e("v_lshl_add_u32 v9, v13, 3, v9")
            for t in range(8):
                e(f"v_xor_b32 v13, {16 * t}, v10")
                e(f"v_add_u32 v{56 + t}, v13, v9")
            e("v_and_b32 v64, 9, v3")
            e("v_and_b32 v13, 2, v3")
            e("v_lshl_or_b32 v64, v13, 1, v64")
            e("v_and_b32 v13, 4, v3")
            e("v_lshrrev_b32 v13, 1, v13")
            e("v_or_b32 v64, v64, v13")
            e("v_lshlrev_b32 v64, 4, v64")
            e("v_lshl_add_u32 v64, v4, 8, v64")

        def w24():
            e("s_sub_u32 s3, s64, 540")
            e("s_cmp_lt_u32 s3, 100")
            e(f"s_cselect_b32 s{S_A}, s{P_WO}, s{P_WD}")
            e(f"s_cselect_b32 s{S_A + 1}, s{P_WO + 1}, s{P_WD + 1}")
            e(f"s_mov_b32 s{S_A + 2}, 2211840")
            e(f"s_cselect_b32 s{S_A + 2}, 819200, s{S_A + 2}")
            e(f"s_mov_b32 s{S_A + 3}, 0x20000")
            e("s_cselect_b32 s46, 20, 54")
            e(f"s_mov_b32 s47, {OFF_W4P}")
            e(f"s_cselect_b32 s47, {OFF_W2P}, s47")
            e("s_cselect_b32 s4, 0, 100")
            for k in range(4):
                e(f"s_mov_b32 s{S_C + k}, s{S_A + k}" if k < 3 else f"s_mov_b32 s{S_C + 3}, 0x20000")
            e("s_sub_u32 s3, s3, s4")
            e(f"s_mul_hi_u32 s65, s3, {((1 << 32) + 4) // 5}")
            e("s_mul_i32 s4, s65, 5")
            e("s_sub_u32 s3, s3, s4")
            e("s_lshl_b32 s4, s65, 5")
            e("s_mov_b32 s5, 16")
            e("s_mov_b32 s6, 4")
            e("s_mov_b32 s7, 8")
            e("s_cmp_eq_u32 s46, 20")

            def wo():
                e("s_mul_i32 s4, s65, 40")
                e("s_mul_i32 s5, s65, 160")
                e(f"s_sub_u32 s5, s5, {16 * 160 - 16}")
                e("s_cmp_lt_u32 s65, 16")
                e("s_cselect_b32 s4, s4, s5")
                e("s_cselect_b32 s5, 20, 40")
                e("s_cselect_b32 s6, 8, 80")
                e("s_cselect_b32 s7, 4, 20")
            e.if_else("s_cbranch_scc0", wo)
            e("v_mul_u32_u24 v65, s7, v11")
            e("v_add_u32 v65, v65, v12")
            e("v_mul_u32_u24 v65, 1280, v65")
            e("v_add_u32 v65, v65, v6")
            e("s_cmp_lt_u32 s64, 910")
            e(f"s_cselect_b32 s7, 0, {OOB:#x}")
            e("v_or_b32 v65, s7, v65")
            e("v_mov_b32 v66, v65")
            e("v_or_b32 v64, s7, v1")
            e("s_mul_i32 s4, s4, 1280")
            e("s_lshl_b32 s7, s3, 8")
            e(f"s_add_u32 s{sPK}, s4, s7")
            e(f"s_add_u32 s{sPK + 3}, s{sPK}, 128")
            for u in range(2):
                e(f"s_mul_i32 s{sPK + 3 * u + 1}, s5, 1280")
                e(f"s_mul_i32 s{sPK + 3 * u + 2}, s6, 1280")
            e("v_lshlrev_b32 v11, 4, v8")
            e("v_and_b32 v12, 1, v8")
            e("v_lshlrev_b32 v12, 4, v12")
            e("v_lshrrev_b32 v13, 1, v8")
            e("v_lshl_add_u32 v12, v13, 3, v12")
            for gi in range(4):
                e("s_lshl_b32 s4, s3, 2")
                if gi:
                    e(f"s_add_u32 s4, s4, {gi}")
                e(f"s_mul_hi_u32 s5, s4, {((1 << 32) + 4) // 5}")
                e("s_mul_i32 s6, s5, 5")
                e("s_sub_u32 s4, s4, s6")
                e("s_lshl_b32 s5, s5, 1")
                e("s_cmp_ge_u32 s4, 3")
                e("s_cselect_b32 s6, 3, 0")
                e("s_addc_u32 s5, s5, 0")
                e("s_sub_u32 s6, s4, s6")
                e("s_lshl_b32 s6, s6, 1")
                e("s_mul_i32 s5, s5, s46")
                e("s_add_u32 s5, s5, s65")
                e("s_mul_i32 s5, s5, 5")
                e("s_add_u32 s5, s5, s6")
                e("s_lshl_b32 s5, s5, 10")
                e(f"s_add_u32 s{sPD + 2 * gi}, s5, s47")
                e("s_mul_i32 s6, s46, 5120")
                e("s_cmp_eq_u32 s4, 2")
                e("s_cselect_b32 s6, s6, 1024")
                e("s_cselect_b32 s7, 32, 8")
                e("s_cselect_b64 vcc, -1, 0")
                e(f"s_add_u32 s{sPD + 2 * gi + 1}, s{sPD + 2 * gi}, s6")
                e("v_cndmask_b32 v13, v11, v12, vcc")
                if gi & 1:
                    e("v_add_u32 v13, 64, v13")
                e("v_add_u32 v14, s7, v13")
                for p in range(2):
                    e(f"v_xor_b32 v{13 + p}, v{13 + p}, v10")
                    e(f"v_add_u32 v{56 + 2 * gi + p}, v{13 + p}, v9")
                    if gi >> 1:
                        e(f"v_add_u32 v{56 + 2 * gi + p}, 4096, v{56 + 2 * gi + p}")
        e("s_cmp_lt_u32 s64, 540")
        e.if_else("s_cbranch_scc0", w3, w24)
        self.slab_offsets((116, -96, 16), sSS, sSD)

    def second_round_queue(self):
        e = self.e
        for u in range(2):
            for i in range(4):
                def fn(q, u=u, i=i):
                    b = sPK + 3 * u
                    if i == 2:
                        e(f"s_add_u32 s{b}, s{b}, s{b + 2}")
                    if i & 1:
                        e(f"s_add_u32 s47, s{b}, s{b + 1}")
                    e(f"s_lshl_b32 m0, s{sW}, 13")
                    e(f"s_add_u32 m0, m0, {L_PACK + 4096 * u + 1024 * i}")
                    e(f"buffer_load_dwordx4 v{65 + u}, {srd((S_A, S_C)[u])}, s{47 if i & 1 else b} offen{self.c['nt']} lds", tag="pack", cost=self.c["c_hbm2"])
                self.queue.append((("pack", u, i), False, fn))
        for i in range(5):
            self.queue.append((("slab", i), False, lambda q, i=i: self.slab_load(i, sSS, 71)))

    def w1_process(self):
        e = self.e
        q = [self.pool.alloc() for _ in range(4)]
        for p in range(4):
            for h in range(2):
                e(f"ds_read_b64_tr_b16 {R(q[p], 2, 2 * h)}, v{140 + 2 * p + h} offset:{2048 * h}")
        for p in range(3):
            e(f"buffer_store_dwordx4 {R(q[p])}, v1, {srd(S_WS)}, s62 offen offset:{1024 * p} sc1", tag="jobst", cost=(76, 1100))
        e(f"buffer_store_dwordx4 {R(q[3])}, v2, {srd(S_WS)}, s62 offen offset:3072 sc1", tag="jobst", cost=(76, 1100))
        for x in q:
            self.pool.release(x)

    def pack_process(self):
        e = self.e
        c = self.c
        pq = [self.pool.alloc() for _ in range(8)]
        L = [lambda: (self.need(("pack", 1, 3)), e.wait_tag("pack"), self.stamp("pack landed"))]
        L += [f"ds_read_b64_tr_b16 {R(pq[t], 2, 2 * h)}, v{56 + t} offset:{2048 * h}" for t in range(8) for h in range(2)]

        def weave():
            rest, out = self.queue, []
            for t in range(8):
                def fn(q, t=t):
                    e(f"buffer_store_dwordx4 {R(pq[t])}, v64, {srd(S_WS)}, s{sPD + t} offen sc1", tag="jobst", cost=c["c_pst"])
                    self.pool.release(pq[t])
                out += [(("packst", 7 - t), False, fn)] + rest[:c["st_gap"]]
                rest = rest[c["st_gap"]:]
            self.queue = out + rest
        return L + [weave]

    def first_slab_process(self):
        L, M, F, qs = self.slab_steps(62, 67, 68, 69, 24)
        for t in L + M + F:
            self.e(*t) if isinstance(t, tuple) else self.e(t)
        for q in qs:
            self.pool.release(q)

    def w1_flag(self):
        e = self.e
        e(f"s_mul_hi_u32 s5, s{sJK}, {((1 << 32) + 4) // 5}")
        e("s_mul_i32 s6, s5, 5")
        e(f"s_sub_u32 s4, s{sJK}, s6")
        e("s_lshl_b32 s4, s4, 2")
        e("s_lshl_b32 s5, s5, 7")
        e("s_add_u32 s4, s4, s5")
        e(f"s_lshl_b32 s5, s{sJC}, 9")
        e("s_add_u32 s4, s4, s5")
        e(f"s_lshl_b32 s5, s{sW}, 13")
        e("s_add_u32 s4, s4, s5")
        e(f"s_add_u32 s0, s{sFL}, s4")
        e(f"s_addc_u32 s1, s{sFL + 1}, 0")

    def x_setup(self):
        e = self.e
        e(f"s_cmp_ge_u32 s{sCB}, 5")
        e("s_cselect_b32 s66, 5, 0")
        e(f"s_sub_u32 s66, s{sCB}, s66")
        e("s_lshl_b32 s66, s66, 1")
        e(f"s_lshr_b32 s67, s{sW}, 1")
        e("s_add_u32 s66, s66, s67")
        e("s_mul_i32 s66, s66, 10240")
        e(f"s_and_b32 s68, s{sW}, 1")
        e("s_mul_i32 s67, s68, 640")
        e("s_mul_i32 s68, s68, 5120")
        e(f"s_mul_i32 s69, s{sRB}, {64 * 1280}")
        e(f"s_sub_u32 s69, s69, {16 * 1280}")

    def x_issue(self, n):
        e = self.e
        for _ in range(n):
            if self.xn == 25:
                break
            j = self.xn % 5
            if j == 0:
                if self.xn:
                    e("s_add_u32 s66, s66, 20480")
                    e("s_cmp_ge_u32 s66, 102400")
                    e("s_cselect_b32 s70, 102400, 0")
                    e("s_sub_u32 s66, s66, s70")
                e("s_add_u32 s70, s66, s69")
                e("s_max_i32 s70, s70, 0")
                e("s_add_u32 s70, s70, s67")
                e("s_add_u32 s71, s66, s68")
            e(f"s_add_u32 m0, s71, {896 * j}")
            e(f"buffer_load_dwordx4 v93, {srd(S_X)}, s70 offen offset:{128 * j}{' nt' if self.xn < self.c['x_nt'] else ''} lds",
              tag=("x", self.xn // 5), cost=self.c["c_hbm"] if self.xn < 5 else None)
            self.xn += 1

    @staticmethod
    def xf(T, i):
        return 98 + 32 * T + 6 * i

    def mod_loads(self):
        e = self.e
        L = []
        for p in range(4):
            for k in range(2):
                def fn(q, p=p, k=k):
                    if k == 0:
                        e(f"s_mul_i32 s46, s{sW}, 640")
                        e(f"s_add_u32 s46, s46, {OFF_MOD + 15360 * p}")
                    e(f"buffer_load_dwordx4 {v(self.MP + 16 * k + 4 * p, 4)}, v74, {srd(S_WS)}, s46 offen offset:{2560 * k} sc1", cost=(64, 600))
                L.append((("modp", p, k), False, fn))
        return L

    def untag_ops(self, b, n, acc):
        L = [f"s_and_b32 s47, s{sN}, 0xff"] + [f"v_xor_b32 v{b + r}, s47, v{b + r}" for r in range(n)]
        L.append(f"v_or_b32 v{acc}, v{b}, v{b + 1}")
        L += [f"v_or3_b32 v{acc}, v{acc}, v{b + r}, v{b + r + 1}" for r in range(2, n, 2)]
        return L + [f"v_and_b32 v{acc}, 0xff, v{acc}", f"v_cmp_ne_u32 vcc, 0, v{acc}"]

    def mod_check_ops(self):
        return self.untag_ops(self.MP, 32, 91)

    def mod_verdict(self, retry):
        e = self.e
        e("s_and_b32 vcc_hi, vcc_hi, 0xff")
        e("s_cmp_lg_u64 vcc, 0")
        e(f"s_cbranch_scc1 {retry}")

    def mod_side(self):
        e = self.e
        b, ca = self.MP, self.MP + 16

        def reload():
            for _, _, fn in self.mod_loads():
                fn(None)
            for t in self.mod_check_ops():
                e(t)
        L = [lambda: self.need(("modp", 3, 1))] + self.mod_check_ops()
        L.append(lambda: (self.stamp("mod chk"), self.check_or_spin(self.mod_verdict, reload), self.stamp("mod ok")))
        for p in range(1, 4):
            for k in (ca, b):
                L += [f"v_pk_add_f32 {v(k + r, 2)}, {v(k + r, 2)}, {v(k + 4 * p + r, 2)}" for r in (0, 2)]
        L += [f"v_cvt_pk_bf16_f32 v{ca + k + 1}, v{ca + k}, v{ca + k + 1}" for k in (0, 2)]
        L += [f"v_lshlrev_b32 v{ca + k}, 16, v{ca + k + 1}" for k in (0, 2)]
        L += [f"v_and_b32 v{ca + k + 1}, 0xffff0000, v{ca + k + 1}" for k in (0, 2)]
        L += [f"v_add_f32 v{ca + r}, 1.0, v{ca + r}" for r in range(4)]
        L += [f"v_cvt_pk_bf16_f32 v{ca + r}, v{ca + r}, v{b + r}" for r in range(4)]
        L.append(f"s_mov_b32 exec_hi, 0xff\nds_write_b128 v84, {v(ca, 4)}\ns_mov_b32 exec_hi, -1")
        L += [f"ds_read_b32 v{self.xw(n)}, v83 offset:{128 * (n >> 1) + 16 * (n & 1)}" for n in range(10)]
        return L

    @staticmethod
    def xw(n):
        return 48 + n if n < 8 else 80 + n

    def run(self, side, n=1):
        for _ in range(n):
            if side:
                t = side.pop(0)
                if callable(t):
                    t()
                elif isinstance(t, tuple):
                    self.e(*t)
                elif t:
                    self.e(t)

    def ln_addr(self):
        e = self.e
        e("v_and_b32 v8, 6, v3")
        e("v_xor_b32 v8, v8, v4")
        e("v_lshlrev_b32 v8, 4, v8")
        e("v_and_b32 v9, 7, v3")
        e("v_lshl_add_u32 v8, v9, 7, v8")
        e("v_lshrrev_b32 v9, 3, v3")
        e("v_mul_u32_u24 v9, 10240, v9")
        e("v_add_u32 v16, v8, v9")
        e("v_mov_b32 v85, v16")
        e(f"s_and_b32 s4, s{sW}, 1")
        e(f"s_mul_i32 s5, s{sW}, 5")
        e("s_lshr_b32 s5, s5, 1")
        e("s_lshl_b32 s5, s5, 10")
        e("s_lshl_b32 s6, s4, 6")
        e("v_xor_b32 v8, s6, v16")
        e("v_xor_b32 v9, 64, v8")
        e("v_add_u32 v8, s5, v8")
        e("s_lshl_b32 s4, s4, 10")
        e("s_add_u32 s5, s5, s4")
        e("v_add_u32 v9, s5, v9")
        e("v_add_u32 v10, 81920, v8")
        e("v_add_u32 v11, 81920, v9")
        e(f"s_lshr_b32 s4, s{sCB}, 1")
        e("s_mul_i32 s4, s4, 5")
        e(f"s_and_b32 s5, s{sCB}, 1")
        e("s_mul_i32 s6, s5, 3")
        e("s_add_u32 s6, s6, s4")
        e("s_add_u32 s4, s4, 2")
        e(f"s_add_u32 s7, s{sW}, 1")
        e("s_mul_i32 s7, s7, 20480")
        for dst, g in ((12, "s6"), (13, None), (14, "s4")):
            if g is None:
                e("s_add_u32 s6, s6, 1")
                g = "s6"
            e(f"s_lshr_b32 s3, {g}, 1")
            e("s_lshl_b32 s3, s3, 10")
            e("s_add_u32 s3, s3, s7")
            e(f"s_and_b32 s65, {g}, 1")
            e("s_lshl_b32 s65, s65, 6")
            if dst != 14:
                e(f"v_xor_b32 v{dst}, s65, v16")
            else:
                e("s_lshl_b32 s5, s5, 5")
                e("s_xor_b32 s65, s65, s5")
                e("v_and_b32 v14, 32, v0")
                e("v_xor_b32 v17, v14, v16")
                e("v_xor_b32 v17, s65, v17")
                e("v_lshrrev_b32 v14, 2, v14")
                e("v_add_u32 v14, v14, v17")
            e(f"v_add_u32 v{dst}, s3, v{dst}")
        e("v_cmp_gt_u32 vcc, 40, v0")
        for r in range(4):
            e(f"v_mov_b32 v{76 + r}, 0x3f803f80")
        e("v_cndmask_b32 v74, v7, v1, vcc")
        e("v_lshrrev_b32 v16, 2, v3")
        e("v_cmp_eq_u32 s[4:5], v16, v4")
        e("v_and_b32 v16, 1, v3")
        e("v_cmp_eq_u32 vcc, 0, v16")
        e("v_mov_b32 v16, 0x01000c0c")
        e("v_mov_b32 v17, 0x0c0c0100")
        e("v_mov_b32 v18, 0x0c0c0c0c")
        e("v_cndmask_b32 v16, v16, v17, vcc")
        e("v_cndmask_b32 v16, v18, v16, s[4:5]")
        e("v_and_b32 v17, 2, v3")
        e("v_cmp_eq_u32 vcc, 0, v17")
        e("v_mov_b32 v82, 0x03020302")
        e("v_mov_b32 v17, 0x01000100")
        e("v_cndmask_b32 v80, v18, v16, vcc")
        e("v_cndmask_b32 v81, v16, v18, vcc")
        e("v_cmp_eq_u32 vcc, 0, v4")
        e("v_lshrrev_b32 v16, 2, v3")
        e("v_lshlrev_b32 v16, 5, v16")
        e("v_cndmask_b32 v82, v82, v17, vcc")
        e("v_cmp_gt_u32 vcc, 2, v4")
        e("v_and_b32 v17, 3, v3")
        e("s_nop 0")
        e("v_cndmask_b32 v82, v18, v82, vcc")
        e("v_and_b32 v17, 3, v3")
        e("v_lshl_add_u32 v16, v17, 2, v16")
        e(f"s_mul_i32 s4, s{sW}, 640")
        e(f"s_add_u32 s4, s4, {L_AS}")
        e("v_add_u32 v83, s4, v16")
        e("v_add_u32 v84, s4, v1")


    def own_stats(self):
        e = self.e
        X, G, S = 100, 120, 124
        e(f"s_cmp_ge_u32 s{sCB}, 5")
        e("s_cselect_b32 s4, 5, 0")
        e(f"s_sub_u32 s4, s{sCB}, s4")
        e("s_mul_i32 s5, s4, 20480")
        e("v_add_u32 v128, s5, v8")
        e("v_add_u32 v129, s5, v9")
        for i in range(5):
            e(f"ds_read_b128 {v(X + 4 * i, 4)}, v{128 + (i & 1)} offset:{(i >> 1) * 1024}")
        e("s_lshl_b32 s4, s4, 8")
        e(f"s_mul_i32 s5, s{sRB}, 1280")
        e(f"s_add_u32 s63, s5, {OFF_LN}".replace("s63", "s61"))
        e("s_add_u32 s60, s61, s4")
        e("v_lshrrev_b32 v130, 2, v3")
        e("v_cmp_eq_u32 s[6:7], v130, v4")
        e("v_and_b32 v130, 3, v3")
        e("v_cmp_eq_u32 s[4:5], 1, v130")
        e("v_cmp_eq_u32 s[64:65], 2, v130")
        e("v_cmp_eq_u32 vcc, 3, v130")
        e("v_lshlrev_b32 v131, 5, v3")
        e(f"v_add_u32 v131, {L_STAT}, v131")
        e(f"s_lshl_b32 s3, s{sW}, 3")
        e("v_add_u32 v130, s3, v131")
        for i in range(5):
            x = v(X + 4 * i, 4)
            self.mfma(v(G, 4), x, x, "0" if i == 0 else None)
            self.mfma(v(S, 4), v(76, 4), x, "0" if i == 0 else None)
        e(f"s_cmp_ge_u32 s{sCB}, 5")
        e(f"s_cselect_b32 s3, 1, s{sW}")
        e("s_lshl_b32 s3, s3, 30")
        e("v_lshlrev_b32 v132, 28, v4")
        e("v_or3_b32 v132, v132, s3, v1")
        e(f"v_cndmask_b32 v{S + 1}, v{G}, v{G + 1}, s[4:5]")
        e(f"v_cndmask_b32 v{S + 1}, v{S + 1}, v{G + 2}, s[64:65]")
        e(f"v_cndmask_b32 v{S + 1}, v{S + 1}, v{G + 3}, vcc")
        e("s_mov_b64 exec, s[6:7]")
        e(f"ds_write_b64 v130, {v(S, 2)}")
        e("s_mov_b64 exec, -1")

    def own_publish(self):
        e = self.e
        b = 100
        e(f"ds_read_b128 {v(b, 4)}, v131")
        e(f"ds_read_b128 {v(b + 4, 4)}, v131 offset:16")
        e(f"s_mov_b32 s4, {f32(-1.0 / 640)}")
        e("s_mov_b32 s5, 0x07060302")
        e("s_mov_b32 s6, 0xffff0000")
        e(f"v_mov_b32 v{b + 9}, s{sN}")
        e(f"v_lshlrev_b32 v{b + 10}, 16, v{b + 9}")
        steps = ["v_pk_add_f32 v[{0}:{1}], v[{0}:{1}], v[{2}:{3}]", "v_pk_add_f32 v[{4}:{5}], v[{4}:{5}], v[{6}:{7}]",
                 "v_pk_add_f32 v[{0}:{1}], v[{0}:{1}], v[{4}:{5}]", "v_mul_f32 v{0}, s4, v{0}", "v_mul_f32 v{1}, s4, v{1}",
                 "v_fma_f32 v{1}, -v{0}, v{0}, -v{1}", "v_and_b32 v{2}, s6, v{0}", "v_max_f32 v{1}, 0, v{1}",
                 "v_sub_f32 v{2}, v{0}, v{2}", "v_add_f32 v{1}, " + f32(1e-5) + ", v{1}", "v_and_b32 v{3}, s6, v{2}",
                 "v_sqrt_f32 v{1}, v{1}", "v_sub_f32 v{3}, v{2}, v{3}",
                 "v_perm_b32 v{4}, v{2}, v{0}, s5", "v_and_b32 v{2}, s6, v{1}", "v_perm_b32 v{5}, v{9}, v{3}, s5",
                 "v_sub_f32 v{2}, v{1}, v{2}", "v_and_b32 v{3}, s6, v{2}", "v_perm_b32 v{6}, v{2}, v{1}, s5",
                 "v_sub_f32 v{3}, v{2}, v{3}", "v_perm_b32 v{7}, v{10}, v{3}, s5"]
        for t in steps:
            e(t.format(*range(b, b + 11)))
        e(f"buffer_store_dwordx4 {v(b + 4, 4)}, v132, {srd(S_WS)}, s60 offen sc1", cost=(64, 700))
        e("v_and_b32 v92, 1, v4")
        e("v_cmp_eq_u32 vcc, 0, v92")
        e("v_lshlrev_b32 v92, 3, v92")
        e("v_lshl_add_u32 v92, v3, 4, v92")
        e(f"v_cndmask_b32 v90, v{b + 10}, v{b + 9}, vcc")
        e("v_and_b32 v90, s6, v90")

    def ln_loads(self):
        return [(("lns", T), False, lambda q, T=T: self.e(
            f"buffer_load_dwordx2 {v(self.xf(T, 0) - 2, 2)}, v92, {srd(S_WS)}, s61 offen offset:{256 * T} sc1", tag="lns", cost=(32, 600)))
            for T in range(5)]

    def ln_check(self, retry):
        e = self.e
        g = [self.xf(T, 0) - 1 for T in range(5)]
        for r in g:
            e(f"v_xor_b32 v{r}, v90, v{r}")
        e(f"v_or3_b32 v91, v{g[0]}, v{g[1]}, v{g[2]}")
        e(f"v_or3_b32 v91, v91, v{g[3]}, v{g[4]}")
        e("v_cmp_lt_u32 vcc, 0xffff, v91")
        e(f"s_cbranch_vccnz {retry}")

    def rstd_ops(self):
        save = [f"v_mov_b64 {v(92 + 2 * T, 2)}, {v(self.xf(T, 0) - 2, 2)}" for T in (3, 4)]
        src = [96, 128, 160, 98, 100]
        L = ["v_lshlrev_b32 v91, 2, v3", f"v_add_u32 v91, {L_RS}, v91"]
        for t in ("v_lshlrev_b32 v{a}, 16, v{g}", "v_and_b32 v{g}, s71, v{g}", "v_add_f32 v{a}, v{a}, v{g}",
                  "v_lshlrev_b32 v{h}, 16, v{h}", "v_add_f32 v{a}, v{a}, v{h}", "v_rcp_f32 v{a}, v{a}"):
            L += [t.format(a=106 + T, g=src[T], h=src[T] + 1) for T in range(5)]
        L += [f"s_mov_b32 exec_lo, s71\ns_mov_b32 exec_hi, 0\nds_write_b32 v91, v{106 + T} offset:{64 * T}\ns_mov_b64 exec, -1"
              for T in range(5)]
        return save, L

    def finish_stats(self, s, q, out):
        e = self.e
        e(f"v_mul_f32 v{s}, s4, v{s}")
        e(f"v_mul_f32 v{q}, s4, v{q}")
        e(f"v_fma_f32 v{q}, -v{s}, v{s}, v{q}")
        e(f"v_max_f32 v{q}, 0, v{q}")
        e(f"v_add_f32 v{q}, {f32(1e-5)}, v{q}")
        e(f"v_rsq_f32 v{out}, v{q}")
        e(f"v_mul_f32 v{out + 1}, -v{s}, v{out}")

    def round_bf16(self, b, n):
        e = self.e
        for k in range(0, n, 2):
            e(f"v_cvt_pk_bf16_f32 v{b + k + 1}, v{b + k}, v{b + k + 1}")
            e(f"v_lshlrev_b32 v{b + k}, 16, v{b + k + 1}")
            e(f"v_and_b32 v{b + k + 1}, s71, v{b + k + 1}")

    def w1_queue(self):
        e = self.e
        e(f"s_lshl_b32 s70, s{sCB}, 2")
        e(f"s_add_u32 s70, s70, s{sW}")
        e("s_mul_i32 s70, s70, 76800")
        if OFF_W1P:
            e(f"s_add_u32 s70, s70, {OFF_W1P}")
        for ks in range(20):
            for p in range(4):
                def fn(q, ks=ks, p=p):
                    if p == 0 and ks:
                        e("s_add_u32 s70, s70, 3840")
                    e(f"buffer_load_dwordx4 {R(q)}, v{2 if p == 3 else 1}, {srd(S_WS)}, s70 offen offset:{1024 * p} sc1", cost=self.c["c_w"])
                self.queue.append((("w1", ks, p), True, fn))

    def ln_apply(self):
        e = self.e
        c = self.c
        D = [32, 40, 72]
        order = [(T, i) for i in range(5) for T in range(5)]

        def operand(i):
            L = []
            for p in range(2):
                x = self.xw(2 * i + p)
                sel = (82, 82, 80, 81) if p == 0 else (80, 81, 82, 82)
                L += [f"v_perm_b32 v{16 + 8 * (i & 1) + 4 * p + r}, v{x}, v{x}, v{sel[r]}" for r in range(4)]
            return L

        def lds(op, n):
            T, i = order[n]
            a, x = f"v{(8 if T < 4 else 10) + (i & 1)}", v(self.xf(T, i), 4)
            return f"{op} {x + ', ' + a if 'read' in op else a + ', ' + x} offset:{(T % 4) * 20480 + (i >> 1) * 1024}"

        def cvt(n):
            T, i = order[n]
            return [f"v_cvt_pk_bf16_f32 v{self.xf(T, i) + r}, v{D[n % 3] + 2 * r}, v{D[n % 3] + 2 * r + 1}" for r in range(4)]
        self.auto(c["depth_x"])
        side = self.mod_side()
        self.run(side, 2)
        self.f1_load()
        self.run(side, len(side))
        self.need(("lns", 4))
        e.wait_tag("lns")
        self.check_or_spin(self.ln_check, lambda: [fn(None) for _, _, fn in self.ln_loads()])
        self.stamp("ln ok")
        pack = self.pack_process()
        self.run(pack, len(pack) - 1)
        self.check_or_spin(self.f1_check, self.f1_load)
        e("s_barrier")
        self.stamp("F1 seen")
        self.pf(99)
        e("s_mov_b32 s71, 0xffff0000")
        self.w1_queue()
        self.pf(c["w1_first"])
        self.run(pack)
        for T, i in order:
            e(f"v_mov_b64 {v(self.xf(T, i) + 4, 2)}, {v(self.xf(T, 0) - 2, 2)}")
        self.run(operand(0) + operand(1), 16)
        self.auto(None)
        self.stamp("opnd")
        e.wait_tag(*[("x", j) for j in range(5)])
        e("s_barrier")
        self.stamp("x landed")
        e(f"ds_read_b128 a[{XRES}:{XRES + 3}], v12", tag="xres")
        e(f"ds_read_b128 a[{XRES + 4}:{XRES + 7}], v13", tag="xres")
        e(f"ds_read_b64 a[{XRES + 8}:{XRES + 9}], v14", tag="xres")
        reads = [lds("ds_read_b128", n) for n in range(25)]
        self.run(reads, 5)
        e.scale = c["sc_ap"]
        self.auto(c["depth_ln"], True)
        writes, nxt = [], []
        for n in range(27):
            self.stamp(f"ap{n}")
            o = cvt(n - 2) if n >= 2 else []
            if n < 25:
                T, i = order[n]
                if T == 0 and 0 < i < 4:
                    nxt = operand(i + 1)
                b, x = 16 + 8 * (i & 1), self.xf(T, i)
                self.run(o, 2)
                self.mfma(v(D[n % 3], 4), v(b, 4), v(x - 2, 4), "0")
                self.run(o, 2)
                self.mfma(v(D[n % 3] + 4, 4), v(b + 4, 4), v(x + 2, 4), "0")
            self.run(o, 4)
            if n >= 2:
                writes.append(lds("ds_write_b128", n - 2))
            if reads:
                self.run(reads, c["ap_rd"])
                if not reads:
                    e.wait_tag("xres")
                    e("s_barrier")
            else:
                self.run(writes, 2 if n % c["ap_catch"] == 0 else 1)
            self.run(nxt, 2)
        self.run(self.rstd_ops()[0] if len(writes) < 15 else None, 2)
        self.run(writes, 99)

    def f1_load(self):
        self.e(f"s_load_dwordx8 s[{sPOLL}:{sPOLL + 7}], s[{sFL}:{sFL + 1}], s62 glc")

    def f1_check(self, top):
        for k in range(5):
            self.e(f"s_cmp_lg_u32 s{sPOLL + k}, s{sN}")
            self.e(f"s_cbranch_scc1 {top}")

    def phase0(self):
        e = self.e
        c = self.c
        self.MP = 16
        self.prologue()
        self.descriptors()
        self.second_round_queue()
        src = dict(h=self.queue, x=[(("x", n), False, lambda q: self.x_issue(1)) for n in range(self.xn, 25)])
        self.queue = []
        for ch in c["order"]:
            self.queue += self.mod_loads() if ch == "m" else self.ln_loads() if ch == "l" else [src[ch].pop(0)]
        assert not src["h"] and not src["x"]
        self.gate = lambda key: key[0] in ("x", "pack")
        self.shadow()
        L = self.touch1()
        self.touch_load = L.pop()
        self.run(L, len(L))
        e("s_lshl_b32 s4, s64, 7")
        e(f"s_add_u32 s4, s4, {OFF_MOD}")
        e("v_mov_b32 v94, v86")
        e("v_writelane_b32 v94, s4, 24")
        e("s_mov_b64 exec, 0x1f00000")
        e(f"buffer_load_dword v87, v94, {srd(S_WS)}, 0 offen", cost=(20, 1400))
        e("s_mov_b64 exec, -1")
        self.pf(c["h_first"])
        self.ln_addr()
        self.w1_flag()
        e("v_lshlrev_b32 v26, 1, v15")
        e(f"v_add_u32 v26, {L_SILU}, v26")
        self.stamp("shadow")
        self.pf(c["x_second"])
        e("v_lshlrev_b32 v23, 16, v23")
        e(f"v_mul_f32 v25, {f32(-LOG2E)}, v23")
        e("v_exp_f32 v25, v25")
        e("v_add_f32 v25, 1.0, v25")
        e("v_rcp_f32 v25, v25")
        e("v_mul_f32 v25, v23, v25")
        e("v_cvt_pk_bf16_f32 v25, v25, v25")
        e("ds_write_b16 v26, v25")
        e(f"s_add_u32 s{sN}, s{sN}, 0x01010101")
        e(f"s_and_b32 s4, s{sN}, 0xfffffff8")
        e(f"s_or_b32 s{sMY}, s{sMY}, s4")
        e.wait_tag("job", ("x", 0))
        e.barrier()
        self.stamp("job landed")
        e("s_sub_u32 s3, s2, 80\ns_cmp_lt_u32 s3, 160")
        e.if_else("s_cbranch_scc0", self.w1_process, self.first_slab_process)
        self.stamp("job done")
        self.pf(c["x_third"])
        self.own_stats()
        self.stamp("own stats")
        e.barrier()
        self.own_publish()
        self.stamp("published")
        self.gate = lambda key: True
        self.pf(c["flag_after"])
        e(f"s_lshl_b32 s62, s{sXCD}, 12")
        e(f"s_lshl_b32 s5, s{sCB}, 9")
        e("s_add_u32 s62, s62, s5")
        e(f"s_lshl_b32 s5, s{sW}, 7")
        e("s_add_u32 s62, s62, s5")
        e(f"s_add_u32 s62, s62, {FL_F1}")
        e.wait_tag("jobst")
        e.barrier()
        e("s_sub_u32 s3, s2, 80\ns_cmp_lt_u32 s3, 160")
        e.if_else("s_cbranch_scc0", lambda: [e(f"s_atomic_swap s{sN}, s[0:1], {FL_F1 + 4096 * r:#x}") for r in range(2)])
        self.stamp("flagged")
        self.f3_prepare()
        self.ln_apply()
        self.stamp("applied")
        e("v_mov_b32 v8, v85")
        e("v_xor_b32 v9, 64, v85")
        e("v_add_u32 v10, 61440, v8")
        e("v_add_u32 v11, 61440, v9")
        e.wait_tag("job")
        e.barrier()
        self.stamp("h1 ready")

    def f3_prepare(self):
        for t in (f"s_lshl_b32 s0, s{sPAIR}, 9", f"s_lshr_b32 s5, s{sM}, 2", "s_lshl_b32 s5, s5, 7", "s_add_u32 s0, s0, s5",
                  f"s_and_b32 s5, s{sM}, 3", "s_lshl_b32 s5, s5, 2", "s_add_u32 s0, s0, s5", f"s_add_u32 s0, s0, {OFF_FLG + FL_F3}",
                  f"v_mov_b32 v94, {OOB:#x}", f"v_mov_b32 v95, s{sMY}", f"s_lshl_b32 s5, s{sW}, 30", "v_writelane_b32 v94, s5, 0"):
            self.e(t)

    def later_setup(self):
        return [f"s_lshl_b32 s64, s{sM}, 2", f"s_add_u32 s64, s64, s{sW}", "s_mul_i32 s64, s64, 61440", f"s_add_u32 s64, s64, {OFF_W3P}",
                f"s_mul_i32 s4, s{sW}, 14", f"s_cmp_eq_u32 s{sW}, 3\ns_cselect_b32 s68, 41, s4",
                f"s_mul_i32 s65, s{sCB}, 54", "s_add_u32 s65, s65, s68", "s_mul_i32 s65, s65, 5120", f"s_add_u32 s65, s65, {OFF_W4P}",
                f"s_mul_i32 s66, s{sM}, 40960", f"s_mul_i32 s60, s{sW}, 10240", "s_add_u32 s66, s66, s60",
                f"s_add_u32 s66, s66, {OFF_W3P + 192 * 20480}", f"s_mul_i32 s5, s{sCB}, 102400", "s_add_u32 s67, s5, s60",
                f"s_add_u32 s67, s67, {OFF_W2P + 61440}", f"s_mul_i32 s61, s{sW}, 15360", "s_add_u32 s62, s5, s61",
                f"s_add_u32 s62, s62, {OFF_W2P}", "v_add_u32 v5, 20480, v1", "v_add_u32 v6, 40960, v1",
                f"s_cmp_ge_u32 s{sM}, 12\ns_cselect_b32 s4, {OOB:#x}, 0", "v_or_b32 v7, s4, v1",
                f"s_cmp_ge_u32 s{sW}, 2\ns_cselect_b32 s69, {OOB:#x}, 0", "v_or_b32 v13, s69, v1"]

    def later_queue(self):
        e = self.e
        c = self.c
        s3, s4_, sx, s2_, s2b = Stream(e, 64), Stream(e, 65), Stream(e, 66), Stream(e, 67), Stream(e, 62)
        w3, w4, w3x, w2 = [], [], [], []
        for ks in range(20):
            for t in range(3):
                def fn(q, ks=ks, t=t):
                    e(f"buffer_load_dwordx4 {R(q)}, v{(1, 5, 6)[t]}, {srd(S_WS)}, {s3.off(1024 * ks)} sc1", cost=c["c_w3"])
                w3.append((("w3", ks, t), True, fn))
        for i in range(14):
            for ct in range(5):
                def fn(q, i=i, ct=ct):
                    e(f"buffer_load_dwordx4 {R(q)}, v{13 if i == 13 else 1}, {srd(S_WS)}, {s4_.off(1024 * (5 * i + ct))} sc1", cost=c["c_w"])
                w4.append((("w4", i, ct), True, fn))
        for n in range(10):
            def fn(q, n=n):
                o = sx.off(1024 * n)
                self.set_m0(60, L_W3X + n // 4 * 4096)
                e(f"buffer_load_dwordx4 v7, {srd(S_WS)}, {o} sc1 lds", tag="w3x", cost=c["c_w3"])
            w3x.append((("w3x", n), False, fn))
        for part, cnt, base, st in ((0, 10, 61440, s2_), (1, 15, 0, s2b)):
            for n in range(cnt):
                def fn(q, n=n, cnt=cnt, base=base, st=st):
                    o = st.off(1024 * n)
                    self.set_m0(60 if cnt == 10 else 61, L_W2 + base + n // 4 * 4096)
                    e(f"buffer_load_dwordx4 v1, {srd(S_WS)}, {o} sc1 lds", tag="w2", cost=c["c_w"])
                w2.append((("w2", part, n), False, fn))
        return w2, w3, w3x, w4

    def touch1(self):
        L = [f"s_lshl_b32 s4, s{sRB}, 5", f"s_lshl_b32 s5, s{sCB}, 2", "s_add_u32 s4, s4, s5", f"s_add_u32 s6, s4, s{sW}",
             "s_mul_i32 s4, s6, 2560", f"s_add_u32 s4, s4, {OFF_O}", f"v_min_u32 v86, {0 if self.c['o_mode'] == 'sc1' else 19}, v0", "v_lshl_add_u32 v86, v86, 7, s4"]
        for lane, sh, off in ((20, 8, OFF_ST), (21, 8, OFF_ST + 128), (22, 7, OFF_FLG + FL_S1), (23, 6, OFF_FLG + FL_S2)):
            L += [f"s_lshl_b32 s4, s6, {sh}", f"s_add_u32 s4, s4, {off}", f"v_writelane_b32 v86, s4, {lane}"]
        L.append(f"buffer_load_dword v87, v86, {srd(S_WS)}, 0 offen")
        return L

    def f3_load(self):
        self.e(f"buffer_load_dwordx4 {v(40, 4)}, v44, {srd(S_WS)}, 0 offen sc1", cost=(200, 800))

    def f3_ops(self):
        L = [f"v_xor_b32 v{r}, s{sMY}, v{r}" for r in range(40, 44)]
        return L + ["v_or_b32 v40, v40, v41", "v_or3_b32 v40, v40, v42, v43", "v_cmp_ne_u32 s[4:5], 0, v40", "v_cmp_lt_u32 vcc, 7, v40"]

    def mv_issue(self):
        e = self.e
        e("v_min_u32 v45, 304, v1")
        e(f"s_mul_i32 s46, s{sW}, 2560")
        e(f"s_mul_i32 s47, s{sCB}, 320")
        e("s_add_u32 s46, s46, s47")
        e(f"s_add_u32 s46, s46, {OFF_MOD + 5120}")
        for p in range(4):
            if p:
                e("s_add_u32 s46, s46, 15360")
            e(f"buffer_load_dwordx4 {v(48 + 4 * p, 4)}, v45, {srd(S_WS)}, s46 offen sc1", cost=(40, 800))

    def mv_check(self, retry):
        for t in self.untag_ops(48, 16, 47):
            self.e(t)
        self.e(f"s_cbranch_vccnz {retry}")

    def mv_process(self):
        e = self.e
        self.check_or_spin(self.mv_check, self.mv_issue)
        for h in range(2):
            e(f"v_pk_add_f32 {v(48 + 2 * h, 2)}, {v(48 + 2 * h, 2)}, {v(52 + 2 * h, 2)}")
            e(f"v_pk_add_f32 {v(56 + 2 * h, 2)}, {v(56 + 2 * h, 2)}, {v(60 + 2 * h, 2)}")
            e(f"v_pk_add_f32 {v(48 + 2 * h, 2)}, {v(48 + 2 * h, 2)}, {v(56 + 2 * h, 2)}")
        self.round_bf16(48, 4)
        e(f"s_cmp_eq_u32 s{sW}, 2")
        e("s_cselect_b32 s4, 1.0, 0")
        for r in range(4):
            e(f"v_add_f32 v{48 + r}, s4, v{48 + r}")
        self.round_bf16(48, 4)
        e(f"s_mul_i32 s4, s{sW}, 320")
        e(f"s_add_u32 s4, s4, {L_MV}")
        e("v_add_u32 v45, s4, v1")
        e("s_mov_b64 exec, 0xfffff")
        e(f"ds_write_b128 v45, {v(48, 4)}")
        e("s_mov_b64 exec, -1")

    def phase1(self):
        e = self.e
        c = self.c
        X = [16 + 4 * T for T in range(5)]
        acc = {}
        n = 180
        for p in range(4):
            for T in range(5):
                if p == 0 and T == 0:
                    continue
                acc[p, T] = n
                n += 4
        self.acc1 = acc

        def rd(T, ks):
            e(f"ds_read_b128 {v(X[T], 4)}, v{(8 if T < 3 else 10) + (ks & 1)} offset:{(T % 3) * 20480 + 1024 * (ks >> 1)}")
        for T in range(5):
            rd(T, 0)
        e.scale = c["sc_k1"]
        L, M, F, sq = self.slab_steps(sSD, 67, 68, 70, 112)
        self.hold = 0
        rs = self.rstd_ops()[1]
        side = L + rs[:4] + M + rs[4:12] + F + [lambda: [self.pool.release(q) for q in sq]] + rs[12:]
        for ks in range(20):
            self.auto(c["depth"], True, max(c["depth"], c["k1_ahead"] - c["k1_decay"] * ks))
            self.stamp(f"k1_{ks}")
            W = [self.need(("w1", ks, p)) for p in range(4)]
            e.wait_regs([R(q) for q in W] + [v(X[0], 4)])
            for T in range(5):
                for p in range(4):
                    if (p, T) not in acc:
                        continue
                    ab = (v(X[T], 4), R(W[p])) if p == 2 else (R(W[p]), v(X[T], 4))
                    self.kmfma(v(acc[p, T], 4), *ab, "0" if ks == 0 else None, side, p == 3)
                if ks < 19:
                    rd(T, ks + 1)
            for q in W:
                self.pool.release(q)
            if ks == c["f3_set"]:
                self.need(("packst", 0))
                e.wait_tag("jobst")
                e("s_barrier")
                e(f"buffer_store_dword v95, v94, {srd(S_WS)}, s0 offen sc1", cost=(20, 700))
                self.stamp("f3 set")
            if ks == 1:
                side += [f"s_lshl_b32 s4, s{sW}, 11", f"s_lshl_b32 s5, s{sPAIR}, 9", "v_lshl_add_u32 v44, v3, 7, s4",
                         "v_and_b32 v45, 3, v0", "v_lshl_add_u32 v45, v45, 7, s5", "v_cmp_eq_u32 vcc, 0, v4", None,
                         "v_cndmask_b32 v44, v45, v44, vcc", f"v_add_u32 v44, {OFF_FLG + FL_F3}, v44"]
                side += self.later_setup()
            if ks == c["touch1"]:
                side.append((self.touch_load, None, (230, 700)))
            if ks == c["f3_load"]:
                assert not side
                self.f3_load()
            if ks == c["f3_check"]:
                def verdict():
                    self.stamp("f3 chk")
                    self.check_or_spin(lambda top: e(f"s_cbranch_vccnz {top}"),
                                       lambda: (e("s_sleep 8"), self.f3_load(), self.run(self.f3_ops(), 8)))
                    e("s_barrier")
                    self.stamp("f3 ok")
                    e(f"s_cmp_eq_u32 s5, 0\ns_cselect_b32 s{sFAST}, {0 if c.get('force_slow') else 1}, 0")
                    self.w2, self.w3, self.w3x, self.w4 = self.later_queue()
                    self.queue += [(("mv",), False, lambda q: self.mv_issue())] + self.w2[:10] + self.w3[:c["w3_early"]] + self.w4[:c["w4_early"]]
                    self.w3, self.w4 = self.w3[c["w3_early"]:], self.w4[c["w4_early"]:]
                side += self.f3_ops() + [verdict] + self.att_setup()
                if c["retouch"]:
                    side += self.code_touch(16, 10, "v0", 117)
        assert not side
        e("s_barrier")
        self.stamp("k1 end")
        early = [x for x in self.queue if x[0][0] not in ("w3", "w4")]
        w3 = [x for x in self.queue if x[0][0] == "w3"] + self.w3
        n3 = max(0, c["w3_pre"] - (60 - len(w3)))
        w4 = [x for x in self.queue if x[0][0] == "w4"] + self.w4
        n4 = max(0, c["w4_pre"] - (70 - len(w4)))
        a, b = self.w3x + w3[:n3], w4[:n4]
        mix = []
        while a:
            mix += a[:1] + b[:c["mix4"]]
            a, b = a[1:], b[c["mix4"]:]
        self.queue = early + self.w2[10:] + mix + b
        self.w3, self.w4 = w3[n3:], w4[n4:]

    def att_setup(self):
        BI, MK, BI0, ONE, RS, RV = 130, 138, 142, 146, 150, 160
        L = [f"s_mul_i32 s4, s{sW}, 2560", f"s_add_u32 s4, s4, {L_ATT}", "v_lshl_add_u32 v36, v3, 3, s4",
             "v_lshl_add_u32 v37, v0, 3, s4", "v_lshrrev_b32 v38, 2, v0", "v_lshl_add_u32 v38, v38, 3, s4",
             f"s_mov_b32 s4, {L_RS}", "v_lshl_add_u32 v40, v3, 2, s4", "v_lshl_add_u32 v41, v4, 4, s4"]
        for T in range(5):
            L.append(f"ds_read_b32 v{RS + 2 * T}, v40 offset:{64 * T}")
        for T in range(5):
            L.append(f"ds_read_b128 {v(RV + 4 * T, 4)}, v41 offset:{64 * T}")
        L += ["v_lshlrev_b32 v40, 2, v4", "v_sub_u32 v40, v3, v40", f"v_mov_b32 v41, {f32(-1e30)}", "v_and_b32 v42, 1, v3",
              "v_cmp_eq_u32 vcc, 0, v42", "v_mov_b32 v43, 0xffff", "v_mov_b32 v44, s71", "v_cndmask_b32 v43, v44, v43, vcc",
              "v_sub_u32 v40, v40, v42"]
        for h in range(2):
            L += [f"v_cmp_le_i32 vcc, {2 * h}, v40", None, f"v_cndmask_b32 v{MK + 2 + h}, 0, v43, vcc", f"v_xor_b32 v{MK + h}, v{MK + 2 + h}, v43"]
        for u in range(2):
            for r in range(4):
                L += [f"v_bfe_i32 v{BI + 4 * u + r}, v{MK + 2 * u + (r >> 1)}, {16 * (r & 1)}, 1\n"
                      f"v_bfi_b32 v{BI + 4 * u + r}, v{BI + 4 * u + r}, 0, v41"]
        L.append(f"s_cmp_eq_u32 s{sRB}, 0\ns_cselect_b64 vcc, -1, 0")
        for r in range(4):
            L.append(f"v_cndmask_b32 v{BI0 + r}, v{BI + r}, v41, vcc\nv_mov_b32 v{ONE + r}, 0x3f803f80")
        L += ["v_and_b32 v34, 31, v0".replace("v34", "v39"), "v_lshlrev_b32 v39, 4, v39", "v_lshrrev_b32 v40, 5, v0",
              "v_mul_u32_u24 v40, 20480, v40", "v_add_u32 v39, v39, v40", "v_mul_u32_u24 v40, 20480, v4", "v_lshl_add_u32 v40, v3, 3, v40",
              "v_cmp_eq_u32 s[30:31], 1, v4", "v_cmp_eq_u32 s[32:33], 2, v4", "v_cmp_eq_u32 s[28:29], 3, v4"]
        return L

    def attention(self):
        e = self.e
        c = self.c
        acc = self.acc1
        E = e
        e.scale = c["sc_mid"]
        self.auto(c["depth_att"])
        Q = {T: 64 + 4 * (T - 1) for T in range(1, 5)}
        K = {T: 80 + 4 * T for T in range(5)}
        V0, VL = 100, 110
        C = 120
        BI, MK, BI0, ONE, RS, RV = 130, 138, 142, 146, 150, 160

        def scale(p, T):
            a = acc[p, T]
            for h in range(2):
                if p == 2:
                    E(f"v_pk_mul_f32 {v(a + 2 * h, 2)}, {v(a + 2 * h, 2)}, {v(RV + 4 * T + 2 * h, 2)}")
                else:
                    E(f"v_pk_mul_f32 {v(a + 2 * h, 2)}, {v(a + 2 * h, 2)}, {v(RS + 2 * T, 2)} op_sel_hi:[1,0]")
        def cvt(dst, p, T):
            for h in range(2):
                E(f"v_cvt_pk_bf16_f32 v{dst + h}, v{acc[p, T] + 2 * h}, v{acc[p, T] + 2 * h + 1}")
        E("v_cmp_eq_u32 vcc, 0, v4")
        for T in range(5):
            scale(3, T)
        for T in range(5):
            cvt(C + 2 * T, 3, T)
        for T in range(5):
            E(f"ds_write_b64 v37, {v(C + 2 * T, 2)} offset:{512 * T}")
            scale(1, T)
        for T in range(5):
            E(f"ds_read_b64 {v(K[T] + 2, 2)}, v36 offset:{512 * T + 128}")
            if T:
                scale(0, T)
        for T in range(5):
            E(f"ds_read_b64_tr_b16 {v(VL + 2 * T, 2)}, v38 offset:{512 * T + 256}")
            scale(2, T)
        for T in range(5):
            cvt(K[T], 1, T)
        for T in range(1, 5):
            cvt(Q[T], 0, T)
            E(f"v_cndmask_b32 v{Q[T] + 2}, 0, v{C + 2 * T}, vcc")
            E(f"v_cndmask_b32 v{Q[T] + 3}, 0, v{C + 2 * T + 1}, vcc")
        self.stamp("att cvt")
        S = {T: 180 + 8 * (T - 1) for T in range(1, 5)}
        for T in range(1, 5):
            self.mfma(v(S[T], 4), v(K[T - 1], 4), v(Q[T], 4), v(BI0 if T == 1 else BI, 4))
            self.mfma(v(S[T] + 4, 4), v(K[T], 4), v(Q[T], 4), v(BI + 4, 4))
        for T in range(5):
            a = acc[2, T]
            E(f"v_cvt_pk_bf16_f32 v{V0 + 2 * T}, v{a}, v{a + 1}")
            E(f"v_cvt_pk_bf16_f32 v{V0 + 2 * T + 1}, v{a + 2}, v{a + 3}")
        Z = {T: 16 + 4 * (T - 1) for T in range(1, 5)}
        for t in ("v_max3_f32 v{z0}, v{s0}, v{s1}, v{s4}", "v_max3_f32 v{z1}, v{s2}, v{s3}, v{s6}", "v_max_f32 v{z0}, v{z0}, v{s5}",
                  "v_max_f32 v{z1}, v{z1}, v{s7}", "v_max_f32 v{z2}, v{z0}, v{z1}", "v_max_f32 v{z3}, v{z0}, v{z1}"):
            for T in range(1, 5):
                E(t.format(**{f"s{k}": S[T] + k for k in range(8)}, **{f"z{k}": Z[T] + k for k in range(4)}))
        for sw in ("v_permlane32_swap_b32", "v_permlane16_swap_b32"):
            for T in range(1, 5):
                E(f"{sw} v{Z[T] + 2}, v{Z[T] + 3}")
            for T in range(1, 5):
                E(f"v_max_f32 v{Z[T] + 2}, v{Z[T] + 2}, v{Z[T] + 3}")
            if sw.startswith("v_permlane32"):
                for T in range(1, 5):
                    E(f"v_mov_b32 v{Z[T] + 3}, v{Z[T] + 2}")
        e(f"s_mov_b32 s4, {f32(LOG2E * 20 ** -0.5)}")
        P = {T: S[T] for T in range(1, 5)}
        for t in ("v_sub_f32 v{0}, v{0}, v{1}", "v_mul_f32 v{0}, s4, v{0}", "v_exp_f32 v{0}, v{0}", "v_cvt_pk_bf16_f32 v{0}, v{0}, v{0}"):
            for T in range(1, 5):
                for k in range(2):
                    E(t.format(Z[T] + k, Z[T] + 2))
        for T in range(1, 5):
            for k in range(4):
                E(f"v_and_b32 v{P[T] + k}, v{Z[T] + (k & 1)}, v{MK + k}")
        self.stamp("att p")
        O0 = {T: 212 + 4 * (T - 1) for T in range(1, 5)}
        O1 = {T: 228 + 4 * (T - 1) for T in range(1, 5)}
        SM = {T: S[T] + 4 for T in range(1, 5)}
        for T in range(1, 5):
            self.mfma(v(SM[T], 4), v(ONE, 4), v(P[T], 4), "0")
        for T in range(1, 5):
            self.mfma(v(O0[T], 4), v(V0 + 2 * (T - 1), 4), v(P[T], 4), "0")
            self.mfma(v(O1[T], 4), v(VL + 2 * (T - 1), 4), v(P[T], 4), "0")
        msk = {2: "s[30:31]", 3: "s[32:33]", 4: "s[28:29]"}
        for T in range(1, 5):
            E(f"v_rcp_f32 v{SM[T]}, v{SM[T]}")
        for T in range(1, 5):
            for h in range(2):
                E(f"v_pk_mul_f32 {v(O0[T] + 2 * h, 2)}, {v(O0[T] + 2 * h, 2)}, {v(SM[T], 2)} op_sel_hi:[1,0]")
        OUT = 16
        self.auto(c["depth_pre_pub"])
        for T in range(1, 5):
            for h in range(2):
                E(f"v_cvt_pk_bf16_f32 v{OUT + 2 * (T - 1) + h}, v{O0[T] + 2 * h}, v{O0[T] + 2 * h + 1}")
        for T in range(2, 5):
            for r in range(4):
                E(f"v_cndmask_b32 v{O1[1] + r}, v{O1[1] + r}, v{O1[T] + r}, {msk[T]}")
            E(f"v_cndmask_b32 v{SM[1]}, v{SM[1]}, v{SM[T]}, {msk[T]}")
        for pr in range(2):
            for h in range(2):
                E(f"v_permlane32_swap_b32 v{OUT + 4 * pr + h}, v{OUT + 4 * pr + 2 + h}")
        for h in range(2):
            E(f"v_pk_mul_f32 {v(O1[1] + 2 * h, 2)}, {v(O1[1] + 2 * h, 2)}, {v(SM[1], 2)} op_sel_hi:[1,0]")
        for h in range(2):
            E(f"v_cvt_pk_bf16_f32 v{OUT + 8 + h}, v{O1[1] + 2 * h}, v{O1[1] + 2 * h + 1}")
        e(f"s_mul_i32 s4, s{sRB}, 81920")
        e(f"s_add_u32 s4, s4, {OFF_O}")
        e(f"s_lshl_b32 s5, s{sCB}, 2")
        e(f"s_add_u32 s5, s5, s{sW}")
        e("s_lshl_b32 s6, s5, 7")
        e("s_add_u32 s6, s6, s4")
        e("s_add_u32 s6, s6, 16384")
        e("s_lshl_b32 s5, s5, 9")
        e("s_add_u32 s4, s4, s5")
        e("s_add_u32 s5, s4, 40960")
        self.ws_store([("buffer_store_dwordx4", v(OUT, 4), "v39", "s4 offen"),
                       ("buffer_store_dwordx4", v(OUT + 4, 4), "v39", "s5 offen"),
                       ("buffer_store_dwordx2", v(OUT + 8, 2), "v40", "s6 offen")], through=c["o_mode"] == "sc1")
        self.stamp("att done")

    def mv_addr(self, full, half):
        e = self.e
        e(f"s_and_b32 s4, s{sCB}, 1")
        e("s_lshl_b32 s5, s4, 6")
        e(f"s_add_u32 s5, s5, {L_MV}")
        e(f"v_lshl_add_u32 v{full}, v4, 5, s5")
        e("s_xor_b32 s4, s4, 1")
        e("s_lshl_b32 s4, s4, 8")
        e(f"s_add_u32 s4, s4, {L_MV}")
        e(f"v_and_b32 v{half}, 1, v4")
        e(f"v_lshl_add_u32 v{half}, v{half}, 5, s4")
        e("v_lshrrev_b32 v15, 1, v4")
        e(f"v_lshl_add_u32 v{half}, v15, 4, v{half}")

    def mv_read(self, vec, dst, full, half):
        e = self.e
        for ct in range(4):
            e(f"ds_read_b128 {v(dst + 4 * ct, 4)}, v{full} offset:{320 * vec + 128 * (ct >> 1) + 16 * (ct & 1)}")
        e(f"ds_read_b128 {v(dst + 16, 4)}, v{half} offset:{320 * vec}")

    def unpack_res(self, dst):
        e = self.e
        for k in range(10):
            e(f"v_accvgpr_read_b32 v{dst + 2 * k + 1}, a{XRES + k}")
            e(f"v_lshlrev_b32 v{dst + 2 * k}, 16, v{dst + 2 * k + 1}")
            e(f"v_and_b32 v{dst + 2 * k + 1}, s71, v{dst + 2 * k + 1}")

    def phase2(self):
        e = self.e
        c = self.c
        A2, WB, ACC = 176, 136, 116
        XR, GA, SB, AA = 96, 76, 56, 36
        self.auto(c["depth_post_pub"])
        self.need(("mv",))
        self.mv_process()
        self.unpack_res(XR)
        self.mv_addr(9, 10)
        e(f"s_lshl_b32 s28, s{sRB}, 2")
        e(f"s_add_u32 s28, s28, s{sW}")
        e("s_mul_i32 s28, s28, 20480")
        e(f"s_add_u32 s29, s28, {OFF_H2}")
        e(f"s_add_u32 s28, s28, {OFF_O}")
        e("v_lshlrev_b32 v11, 3, v0")
        e(f"v_add_u32 v8, {L_W2}, v1")
        e(f"v_add_u32 v12, {L_W2 + 61440}, v1")
        self.group_sync(FL_S1, sRB, sCB, 8, c["s_before"], c["s_between"], "w2")
        self.stamp("sync1")
        so = Stream(e, 28)
        a2 = []
        for ks in range(20):
            def fn(q, ks=ks):
                if ks < 16:
                    e(f"buffer_load_dwordx4 {v(A2 + 4 * ks, 4)}, v1, {srd(S_WS)}, {so.off(1024 * ks)} sc1")
                else:
                    for h in range(2):
                        e(f"buffer_load_dwordx2 {v(A2 + 4 * ks + 2 * h, 2)}, v11, {srd(S_WS)}, {so.off(1024 * ks + 512 * h)} sc1", cost=(50, 500))
            a2.append((("a2", ks), False, fn))
        self.queue = a2 + self.queue
        self.pf(c["depth"])
        self.mv_read(0, GA, 9, 10)
        self.mv_read(1, SB, 9, 10)
        self.mv_read(2, AA, 9, 10)

        def rd(n):
            e(f"ds_read_b128 {v(WB + 4 * (n % 10), 4)}, v{8 if n < 60 else 12} offset:{1024 * (n % 60)}")
        for n in range(9):
            rd(n)
        self.auto(c["depth"], True)
        for ks in range(20):
            self.need(("a2", ks))
            for ct in range(5):
                n = 5 * ks + ct
                self.mfma(v(ACC + 4 * ct, 4), v(WB + 4 * (n % 10), 4), v(A2 + 4 * ks, 4), "0" if ks == 0 else None)
                if n + 9 < 100:
                    rd(n + 9)
                if n == c["k2_stop"]:
                    self.auto(None)
        self.stamp("k2 end")
        e(f"s_lshl_b32 s4, s{sRB}, 2")
        e(f"s_add_u32 s4, s4, s{sW}")
        e("s_lshl_b32 s4, s4, 11")
        e(f"s_add_u32 s30, s4, {OFF_ST}")
        e(f"s_lshl_b32 s4, s{sCB}, 8")
        e("s_add_u32 s31, s30, s4")
        e("v_lshrrev_b32 v12, 1, v4")
        e("v_lshlrev_b32 v12, 7, v12")
        e("v_lshl_add_u32 v12, v3, 3, v12")
        e("v_and_b32 v11, 1, v4")
        e("v_lshlrev_b32 v14, 31, v11")
        e("v_or_b32 v14, v14, v12")
        e("v_lshl_add_u32 v11, v11, 10, v12")
        for k in range(10):
            e(f"v_pk_fma_f32 {v(XR + 2 * k, 2)}, {v(ACC + 2 * k, 2)}, {v(GA + 2 * k, 2)}, {v(XR + 2 * k, 2)}")
        e(f"v_pk_add_f32 v[16:17], {v(XR, 2)}, {v(XR + 2, 2)}")
        e(f"v_pk_mul_f32 v[18:19], {v(XR, 2)}, {v(XR, 2)}")
        for k in range(1, 10):
            if k > 1:
                e(f"v_pk_add_f32 v[16:17], v[16:17], {v(XR + 2 * k, 2)}")
            e(f"v_pk_fma_f32 v[18:19], {v(XR + 2 * k, 2)}, {v(XR + 2 * k, 2)}, v[18:19]")
        e("v_add_f32 v16, v16, v17")
        e("v_add_f32 v18, v18, v19")
        e("v_permlane32_swap_b32 v16, v18")
        e("v_add_f32 v16, v16, v18")
        e("v_mov_b32 v18, v16")
        e("v_permlane16_swap_b32 v16, v18")
        e("v_add_f32 v16, v16, v18")
        e(f"v_mov_b32 v17, s{sN}")
        self.ws_store([("buffer_store_dwordx2", "v[16:17]", "v14", "s31 offen")])

        def ld():
            for k in range(4):
                e(f"buffer_load_dwordx2 {v(20 + 2 * k, 2)}, v11, {srd(S_WS)}, s30 offen offset:{256 * k} sc1", cost=(40, 500))

        def ck(top):
            e("v_xor_b32 v28, v21, v17")
            for k in range(1, 4):
                e(f"v_bitop3_b32 v28, v28, v{21 + 2 * k}, v17 bitop3:0xf6")
            e("v_cmp_ne_u32 vcc, 0, v28")
            e(f"s_cbranch_vccnz {top}")
        for k in range(10):
            e(f"v_cvt_pk_bf16_f32 v{GA + k}, v{XR + 2 * k}, v{XR + 2 * k + 1}")
            e(f"v_accvgpr_write_b32 a{XRES + k}, v{GA + k}")
        self.stamp("st sent")
        self.poll(ld, ck)
        e.wait_vm(0)
        self.stamp("st got")
        e.t += c["t_stat"]
        self.fill(c["e2_fill"])
        e("v_add_f32 v20, v20, v22")
        e("v_add_f32 v24, v24, v26")
        e("v_add_f32 v20, v20, v24")
        e("v_mov_b32 v21, v20")
        e("v_permlane16_swap_b32 v20, v21")
        e("v_add_f32 v20, v20, v21")
        e("v_mov_b32 v21, v20")
        e("v_permlane32_swap_b32 v20, v21")
        e(f"s_mov_b32 s4, {f32(1.0 / 640)}")
        self.finish_stats(20, 21, 22)
        for k in range(10):
            e(f"v_pk_fma_f32 {v(XR + 2 * k, 2)}, {v(XR + 2 * k, 2)}, v[22:23], v[22:23] op_sel:[0,0,1] op_sel_hi:[1,0,1]")
        for k in range(10):
            e(f"v_pk_fma_f32 {v(XR + 2 * k, 2)}, {v(XR + 2 * k, 2)}, {v(AA + 2 * k, 2)}, {v(SB + 2 * k, 2)}")
        for k in (8, 9, 0, 1, 2, 3, 4, 5, 6, 7):
            e(f"v_cvt_pk_bf16_f32 v{16 + k}, v{XR + 2 * k}, v{XR + 2 * k + 1}")
            if k >= 8:
                e(f"v_mov_b32 v{18 + k}, v{16 + k}")
        e("v_permlane32_swap_b32 v24, v26")
        e("v_permlane32_swap_b32 v25, v27")
        e(f"s_lshr_b32 s4, s{sCB}, 1")
        e("s_mul_i32 s4, s4, 5120")
        e("s_add_u32 s29, s29, s4")
        e(f"s_and_b32 s5, s{sCB}, 1")
        e("s_mul_i32 s4, s5, 3072")
        e("s_add_u32 s4, s4, s29")
        e("s_lshl_b32 s5, s5, 9")
        e("s_add_u32 s5, s5, s29")
        e("v_lshlrev_b32 v12, 26, v0")
        e(f"v_and_b32 v12, {OOB:#x}, v12")
        e("v_or_b32 v12, v12, v1")
        self.ws_store([("buffer_store_dwordx4", "v[16:19]", "v1", "s4 offen"),
                       ("buffer_store_dwordx4", "v[20:23]", "v1", "s4 offen offset:1024"),
                       ("buffer_store_dwordx4", "v[24:27]", "v12", "s5 offen offset:2048")])
        self.stamp("p2 done")

    def flag_ops(self, half):
        e = self.e

        def signal():
            self.ws_store([("buffer_store_dword", "v15", "v14", "s33 offen" + (" offset:64" if half else ""))], tag=None)

        def request():
            e(f"s_load_dwordx16 s[36:51], s[{sFL}:{sFL + 1}], s32")

        def again():
            e(f"s_cmp_lt_u32 s3, {NREP}")
            e.if_else("s_cbranch_scc0", lambda: (e("s_add_u32 s32, s32, 128"), request()),
                      lambda: e(f"s_load_dwordx16 s[36:51], s[{sFL}:{sFL + 1}], s32 glc"))
            self.run(list(fold), len(fold))
        fold = [f"s_xor_b64 s[{k}:{k + 1}], s[{k}:{k + 1}], s[6:7]" + (f"\ns_or_b64 s[36:37], s[36:37], s[{k}:{k + 1}]" if k > 36 else "")
                for k in range(36, 52, 2)]

        def verdict():
            self.stamp(f"h{half} chk")
            self.check_or_spin(lambda top: e(f"s_cmp_lg_u64 s[36:37], 0\ns_cbranch_scc1 {top}"), again)
            self.stamp(f"h{half} ok")
            self.open.add(half)
        return signal, request, fold + [verdict]

    def drain_and(self, signal):
        e = self.e
        h, e.hook = e.hook, None
        e.wait_tag("pub")
        e("s_barrier")
        signal()
        e.hook = h

    def h_epilogue(self, acc, half, alone):
        OUT = 36
        L = [] if alone else [None] * 2
        for t in (3, 0, 1, 2):
            n = 4 if t < 3 else 2
            if alone:
                L += [f"v_pk_mul_f32 {v(acc[t, k], 2)}, {v(acc[t, k], 2)}, {v(acc[t, k] + 2, 2)}" for k in range(n)]
            else:
                L += [f"v_mul_f32 v{acc[t, k] + r}, v{acc[t, k] + r}, v{acc[t, k] + 2 + r}" for k in range(n) for r in range(2)]
            L += [f"v_cvt_pk_bf16_f32 v{OUT + 4 * t + k}, v{acc[t, k]}, v{acc[t, k] + 1}" for k in range(n)]
        for a, b in ((0, 2), (1, 3)):
            L += [f"v_permlane32_swap_b32 v{OUT + 4 * t + a}, v{OUT + 4 * t + b}" for t in (3, 0, 1, 2)]
        for t in (3, 0, 1, 2):
            L += [f"v_permlane16_swap_b32 v{OUT + 4 * t + a}, v{OUT + 4 * t + a + 1}" for a in (0, 2)]
            where = f"v11, {srd(S_WS)}, s29 offen" + (f" offset:{256 * t}" if t else "") if t < 3 else f"v12, {srd(S_WS)}, s31 offen"
            L.append((f"buffer_store_dwordx4 {v(OUT + 4 * t, 4)}, {where} sc1", "pub", self.c["c_pst"]))
        if alone:
            self.run(L, len(L))
        if half == 0:
            L += [f"s_add_u32 s29, s29, {2 * 55296}", f"s_add_u32 s31, s31, {2 * 55296}"]
        return L

    def phase34(self):
        e = self.e
        c = self.c
        X, WX = [16 + 4 * T for T in range(4)], 32
        acc3 = []
        for base in (144, 200):
            units = [(t, T) for t in range(4) for T in range(4 if t < 3 else 2)]
            acc3.append({u: base + 4 * n for n, u in enumerate(units)})
        self.pool.add([("v", b) for b in range(56, 144, 4)])
        e(f"s_lshl_b32 s28, s{sPAIR}, 3")
        e(f"s_lshr_b32 s5, s{sW}, 1")
        e("s_lshl_b32 s4, s5, 2")
        e("s_add_u32 s28, s28, s4")
        e(f"s_and_b32 s4, s{sW}, 1")
        e("s_add_u32 s28, s28, s4")
        e("s_mul_i32 s28, s28, 20480")
        e(f"s_add_u32 s28, s28, {OFF_H2}")
        e("s_add_u32 s0, s28, 40960")
        e(f"s_mul_i32 s30, s{sW}, 24576")
        e("s_mul_i32 s5, s5, 20480")
        e(f"s_add_u32 s5, s5, {L_W3X}")
        e("v_add_u32 v10, s5, v1")
        e("s_mul_i32 s5, s4, 49152")
        e(f"s_add_u32 s6, s5, {L_A3}")
        e("v_add_u32 v8, s6, v1")
        e(f"s_sub_u32 s5, {L_A3 + 49152}, s5")
        e("v_add_u32 v9, s5, v1")
        self.group_sync(FL_S2, sPAIR, sM, 16, c["s_before"], c["s_between"], "w3x")
        self.stamp("sync2")
        e.scale = c["sc_k3"]
        sa, sb, s4 = Stream(e, 28), Stream(e, 0), Stream(e, 1)

        J = c["k3_joint"]
        seq = [(h, ks) for ks in range(J) for h in range(2)] + [(h, ks) for h in range(2) for ks in range(J, 20)]
        at = {x: u for u, x in enumerate(seq)}
        endA = at[0, 19] + 1

        def dma(u):
            h, ks = seq[u]
            o = (sa, sb)[h].off(1024 * ks)
            self.set_m0(30, L_A3 + 12288 * h + (ks % 12) // 4 * 4096)
            e(f"buffer_load_dwordx4 v1, {srd(S_WS)}, {o} sc1 lds", tag=("a3", u), cost=c["c_a3"])

        def a4(q, h, i, sl):
            if i == 13:
                e(f"v_or_b32 v2, s69, v{5 + sl}")
            e(f"buffer_load_dwordx4 {R(q)}, v{2 if i == 13 else 5 + sl}, {srd(S_WS)}, {s4.off(1024 * i + 110592 * h)} sc1", cost=c["c_a4"])
        bars = c["k3_bars"]
        cover = lambda u: max(b for b in bars if b <= u)
        items = [((cover(u) - 1) * 14, seq[u][0] - 2, (("a3", u), False, lambda q, u=u: dma(u))) for u in range(40)]
        for x in self.queue + self.w3 + self.w4:
            items.append((14 * at[0, x[0][1]], 1, x) if x[0][0] == "w3" else (560 + 10 * x[0][1], 1, x))
        tailn = c["k4_tail"]
        for h in range(2):
            for i in range(14):
                for sl in range(2):
                    late = h == 1 and i >= 14 - tailn and sl == 0
                    items.append((560 + 140 * h + 10 * i + (1000 if late else 0), 2,
                                  (("a4", h, i, sl), True, lambda q, h=h, i=i, sl=sl: a4(q, h, i, sl))))
        items.sort(key=lambda z: z[:2])
        self.queue = [z[2] for z in items]
        dead = {z[2][0]: z[0] for z in items}
        state = dict(done=0, now=0)
        self.open = set()

        def gate(key):
            if key[0] == "a3":
                h, ks = seq[key[1]]
                return ks < 12 or at[h, ks - 12] < state["done"]
            return key[1] in self.open if key[0] == "a4" else True
        self.gate = gate
        self.soon = lambda key: key[0] == "w4" or dead[key] - state["now"] <= c["k3_ahead"]
        self.skip, self.reserve = True, c["reserve"]

        def rd(T, u):
            h, ks = seq[u]
            e(f"ds_read_b128 {v(X[T], 4)}, v{8 if T < 2 else 9} offset:{24576 * (T % 2) + 12288 * h + 1024 * (ks % 12)}")

        def rdx(u):
            if not u or seq[u][1] != seq[u - 1][1]:
                e(f"ds_read_b128 {v(WX, 4)}, v10 offset:{1024 * seq[u][1]}")

        def landed(a, b):
            for u in range(a, b):
                self.need(("a3", u))
            e.wait_tag(*[("a3", u) for u in range(a, b)])
        self.auto(c["depth"], True)
        landed(0, bars[1])
        e("s_barrier")
        self.stamp("a3 first")
        rdx(0)
        for T in range(4):
            rd(T, 0)
        side = [f"s_and_b32 s4, s{sW}, 1", "s_lshl_b32 s4, s4, 1", "v_xor_b32 v11, s4, v4", "v_and_b32 v12, 1, v11",
                "v_lshrrev_b32 v11, 1, v11", "v_lshl_add_u32 v11, v11, 2, v12", "v_mul_u32_u24 v11, 55296, v11",
                "v_lshl_add_u32 v11, v3, 4, v11", f"s_cmp_ge_u32 s{sM}, 12\ns_cselect_b32 s4, {OOB:#x}, 0",
                "v_lshlrev_b32 v12, 26, v0", f"v_and_b32 v12, {OOB:#x}, v12", "v_or3_b32 v12, v12, s4, v11",
                f"s_mul_i32 s31, s{sPAIR}, {8 * 55296}", f"s_add_u32 s31, s31, {OFF_H}", f"s_lshl_b32 s4, s{sM}, 2",
                f"s_add_u32 s4, s4, s{sW}", "s_mul_i32 s5, s4, 768", "s_add_u32 s29, s31, s5", "s_lshr_b32 s5, s4, 1",
                "s_add_u32 s5, s5, 192", "s_lshl_b32 s5, s5, 8", "s_add_u32 s31, s31, s5",
                f"s_lshl_b32 s32, s{sPAIR}, 12", f"s_add_u32 s32, s32, {FL_S3}", "s_lshl_b32 s4, s4, 6", "s_add_u32 s4, s4, s32",
                f"s_add_u32 s4, s4, {OFF_FLG}", "v_mov_b32 v14, 0",
                (f"buffer_load_dword v7, v14, {srd(S_WS)}, s4 offen", None, (20, 900)),
                f"s_lshl_b32 s33, s{sM}, 2", "s_add_u32 s33, s33, s32", f"s_add_u32 s33, s33, {OFF_FLG}",
                f"s_lshl_b32 s4, s{sW}, 28", "v_lshlrev_b32 v14, 26, v0", f"v_and_b32 v14, {OOB:#x}, v14",
                "v_lshl_add_u32 v14, v0, 7, v14", "v_or_b32 v14, s4, v14", f"v_mov_b32 v15, s{sN}",
                f"s_mov_b32 s6, s{sN}", f"s_mov_b32 s7, s{sN}",
                f"s_mul_i32 s1, s{sRB}, {4 * 55296}", "s_lshl_b32 s4, s68, 10", "s_add_u32 s1, s1, s4", f"s_add_u32 s1, s1, {OFF_H}"]
        if c["retouch"]:
            side = self.code_touch(28, 8, "v0", 2) + side
        signal, request, check = self.flag_ops(0)
        for u in range(40):
            h, ks = seq[u]
            state["now"] = 14 * u
            acc = acc3[h]
            self.stamp(f"k3_{u}")
            W = [self.need(("w3", ks, t)) for t in range(3)]
            if u == endA:
                assert not side
                side = self.h_epilogue(acc3[0], 0, c["ea_alone"])
                side += [lambda: self.pool.add([("v", b) for b in range(184, 200, 4)]),
                         f"s_and_b32 s4, s{sW}, 1", "s_mul_i32 s5, s4, 55296", "v_add_u32 v5, s5, v1", "s_sub_u32 s5, 55296, s5",
                         "v_add_u32 v6, s5, v1"]
            if u + 1 in bars:
                i = bars.index(u + 1)
                landed(u + 1, bars[i + 1] if i + 1 < len(bars) else 40)
                e("s_barrier")
                state["done"] = u
            if u == endA + c["ha_flag"]:
                assert not side
                self.drain_and(signal)
            if u == endA + c["ha_req"]:
                request()
            if u == endA + c["ha_chk"]:
                side += check
            e.wait_regs([R(q) for q in W] + [v(X[0], 4)])
            for T in range(4):
                for t in range(4):
                    if (t, T) not in acc:
                        continue
                    self.kmfma(v(acc[t, T], 4), R(W[t]) if t < 3 else v(WX, 4), v(X[T], 4), "0" if ks == 0 else None,
                               side, (t + 1, T) not in acc)
                if u < 39:
                    rd(T, u + 1)
                    if T == 2:
                        rdx(u + 1)
            if h:
                for q in W:
                    self.pool.release(q)
        self.run(side, len(side))
        self.stamp("k3 end")
        state["now"] = 9999
        self.model.append(("w4 left", sum(x[0][0] == "w4" for x in self.queue)))
        self.pool.add([("v", b) for b in range(16, 36, 4)])
        ACC = (144, 200)
        XR, RB = 36, 56
        signal, request, check = self.flag_ops(1)
        self.pf(c["eb_pre"])
        side = self.h_epilogue(acc3[1], 1, c["eb_alone"])
        side += [f"s_lshl_b32 s32, s{sPAIR}, 12", f"s_add_u32 s32, s32, {FL_S3 + 64}"]

        def red_write(h, sl):
            return [f"ds_write_b128 v{8 + sl}, {v(ACC[h] + 20 * sl + 4 * ct, 4)} offset:{L_A + 40960 * h + 1024 * ct}" for ct in range(5)]

        def step(h, i, sl, last):
            W = [self.need(("w4", i, ct)) for ct in range(5)]
            A = self.need(("a4", h, i, sl))
            e.wait_regs([R(q) for q in W + [A]])
            for ct in range(5):
                self.kmfma(v(ACC[h] + 20 * sl + 4 * ct, 4), R(W[ct]), R(A), "0" if i == 0 else None, side, ct == 4)
            self.pool.release(A)
            if last:
                for q in W:
                    self.pool.release(q)
        self.auto(c["depth"], True, c["k4_ahead"])
        for i in range(14):
            self.stamp(f"k4a_{i}")
            if i == c["hb_flag"]:
                assert not side
                self.drain_and(signal)
                self.pool.add([("v", b) for b in range(240, 256, 4)])
                side += [f"s_and_b32 s4, s{sW}, 1", "s_mul_i32 s4, s4, 20480", f"s_mul_i32 s5, s{sW}, 5120", "s_add_u32 s0, s4, s5",
                         "v_add_u32 v8, s0, v1", "s_sub_u32 s4, 20480, s4", "s_add_u32 s0, s4, s5", "v_add_u32 v9, s0, v1"]
            if i == c["hb_req"]:
                request()
            if i == c["hb_chk"]:
                side += check
            for sl in range(2):
                step(0, i, sl, False)
        if c["hb_req"] > 13:
            request()
        self.auto(None)
        wr = red_write(0, 0) + red_write(0, 1)
        if c["hb_chk"] > 13:
            self.run(wr, 5)
            side += check
        self.run(side, len(side))
        self.stamp("k4a end")
        self.pf(c["depth"] - e.backlog())
        self.run(wr, c["wr_now"])
        self.auto(c["depth"], True)
        side = wr + self.final_prepare(XR, 164)
        for i in range(14 - tailn):
            for sl in range(2):
                step(1, i, sl, sl == 1)
        for i in range(14 - tailn, 14):
            step(1, i, 1, False)
        side += [None] * 2 + [x for w in red_write(1, 1) for x in (w, None)]
        for i in range(14 - tailn, 14):
            step(1, i, 0, True)
        self.run(side, len(side))
        self.stamp("k4 end")
        e(f"s_cmp_ge_u32 s{sW}, 2")
        e.if_else("s_cbranch_scc0", lambda: [e(f"v_mov_b64 {v(ACC[0] + 2 * k, 2)}, {v(ACC[1] + 2 * k, 2)}") for k in range(10)],
                  lambda: self.run(red_write(1, 0), 5))
        self.stamp("red sent")
        e.barrier()
        self.stamp("red bar")
        GB = 164
        for ct in range(5):
            for k in range(3):
                e(f"ds_read_b128 {v(RB + 12 * ct + 4 * k, 4)}, v{10 + k} offset:{1024 * ct}")
        O = 16
        for ct in range(5):
            r, a = RB + 12 * ct, ACC[0] + 4 * ct
            for t in ("v_pk_add_f32 v[{a}:{a1}], v[{a}:{a1}], v[{r0}:{r01}]", "v_pk_add_f32 v[{r1}:{r11}], v[{r1}:{r11}], v[{r2}:{r21}]",
                      "v_pk_add_f32 v[{a}:{a1}], v[{a}:{a1}], v[{r1}:{r11}]", "v_pk_fma_f32 v[{a}:{a1}], v[{a}:{a1}], v[{g}:{g1}], v[{x}:{x1}]",
                      "v_cvt_pk_bf16_f32 v{o}, v{a}, v{a1}"):
                for h in range(2):
                    k = 2 * ct + h
                    d = dict(a=a + 2 * h, r0=r + 2 * h, r1=r + 4 + 2 * h, r2=r + 8 + 2 * h, g=GB + 2 * k, x=XR + 2 * k)
                    e(t.format(o=O + k, **d, **{n + "1": x + 1 for n, x in d.items()}))
            if ct == 1:
                e(f"buffer_store_dwordx4 {v(O, 4)}, v14, {srd(S_OUT)}, s4 offen{c['out_mod']}")
            if ct == 3:
                e(f"buffer_store_dwordx4 {v(O + 4, 4)}, v14, {srd(S_OUT)}, s4 offen offset:64{c['out_mod']}")
            if ct == 4:
                e(f"buffer_store_dwordx2 {v(O + 8, 2)}, v15, {srd(S_OUT)}, s5 offen{c['out_mod']}")

    def final_prepare(self, XR, GB):
        rec = []
        real, self.e = self.e, rec.append
        self.mv_addr(10, 11)
        self.mv_read(3, GB, 10, 11)
        self.unpack_res(XR)
        self.e = real
        for k in range(3):
            rec += [f"s_add_u32 s4, s{sW}, {k + 1}", "s_and_b32 s4, s4, 3", f"s_lshl_b32 s5, s{sW}, 2", "s_add_u32 s4, s4, s5",
                    "s_mul_i32 s4, s4, 5120", f"v_add_u32 v{10 + k}, s4, v1"]
        rec += ["v_mul_u32_u24 v14, 1280, v3", "v_and_b32 v15, 1, v4", "v_lshl_add_u32 v15, v15, 4, v14", "v_lshrrev_b32 v7, 1, v4",
                "v_lshl_add_u32 v15, v7, 3, v15", "v_lshl_add_u32 v14, v4, 4, v14", f"s_lshl_b32 s4, s{sRB}, 2", f"s_add_u32 s4, s4, s{sW}",
                "s_mul_i32 s4, s4, 20480", f"s_mul_i32 s5, s{sCB}, 160", "s_add_u32 s4, s4, s5", f"s_and_b32 s6, s{sCB}, 1",
                "s_xor_b32 s5, s6, 1", "s_lshl_b32 s5, s5, 7", "s_add_u32 s5, s5, s4", "s_lshl_b32 s6, s6, 5", "s_add_u32 s4, s4, s6"]
        return rec

    def finish(self):
        e = self.e
        e("s_lshl_b32 s4, s2, 2")
        e(f"s_add_u32 s4, s4, s{sW}")
        e("s_cmp_eq_u32 s4, 0")
        e.if_else("s_cbranch_scc0", lambda: e(f"s_atomic_swap s{sN}, s[{sFL}:{sFL + 1}], {FL_EPOCH}"))
        self.stamp("last")
        if self.c.get("stamps"):
            e.force_wait(vm=0)
            self.stamp("end")
            e("s_memrealtime s[100:101]")
            e.force_wait(lg=0)
            e("s_lshl_b32 s4, s4, 6")
            e(f"s_add_u32 s4, s4, {OFF_STAMP}")
            e("v_mov_b32 v8, 0")
            for k in range(self.nstamp):
                e(f"v_mov_b32 v9, s{STAMP0 + 2 * k}")
                e(f"buffer_store_dword v9, v8, {srd(S_WS)}, s4 offen offset:{4 * k}")
            for k in range(2):
                e(f"v_mov_b32 v9, s{98 + 2 * k}")
                e(f"buffer_store_dword v9, v8, {srd(S_WS)}, s4 offen offset:{52 + 4 * k}")
            e(f"v_mov_b32 v9, s{sFAST}")
            e(f"buffer_store_dword v9, v8, {srd(S_WS)}, s4 offen offset:60")
        e.label("L_end")
        e("s_endpgm")

    def build(self):
        stop = self.c.get("stop", 9)
        self.phase0()
        self.phase1()
        if stop >= 1:
            self.attention()
        if stop >= 2:
            self.phase2()
        if stop >= 3:
            self.phase34()
        self.finish()
        head = open(f"cdna_kernels/{NAME}.s.ref").read().split("\n")
        pre = [l for l in head if l.startswith(";") and "@launch" not in l]
        s = "\n".join(pre) + f"\n; @launch grid=(256,1,1) block=(256,1,1) lds={LDS_BYTES}\n"
        s += f'.amdgcn_target "amdgcn-amd-amdhsa--gfx950"\n.text\n.globl {NAME}_kernel\n.p2align 8\n.type {NAME}_kernel,@function\n{NAME}_kernel:\n'
        s += self.e.text() + "L_last:\n"
        s += f""".section .rodata,"a"
.p2align 6
.amdhsa_kernel {NAME}_kernel
  .amdhsa_next_free_vgpr 512
  .amdhsa_next_free_sgpr 102
  .amdhsa_accum_offset 256
  .amdhsa_group_segment_fixed_size 0
  .amdhsa_kernarg_size 96
  .amdhsa_user_sgpr_count 2
  .amdhsa_user_sgpr_kernarg_segment_ptr 1
  .amdhsa_system_sgpr_workgroup_id_x 1
.end_amdhsa_kernel
"""
        return s


DEFAULT = dict(
    ws_base=0, out_mod="", nt=" nt", x_nt=0, x_first=5, h_first=2, x_second=4, x_third=2, flag_after=9,
    order="hhxhhxhhxhhxhxhxhxhh" + "mxxxl" + "x" * 10, w1_first=2, depth_x=10,
    ap_rd=4, ap_catch=3, st_gap=1, k1_ahead=9, k1_decay=1, depth_ln=9, c_pst=(100, 700),
    touch1=6, touch3=8, touch_mod="", h_mode="sc1", o_mode="sc1",
    f3_set=1, f3_load=8, f3_check=10,
    w3_early=0, w4_early=30, w3_pre=18, w4_pre=45, mix4=1, reserve=12, k4_tail=3, k4_ahead=9, wr_now=0, ea_alone=1, eb_alone=1, eb_pre=0, gap=12,
    k3_joint=8, k3_ahead=200, ha_flag=4, ha_req=7, ha_chk=8, hb_flag=5, hb_req=9, hb_chk=11,
    retouch=1, sc_ap=0.8, sc_k1=0.85, sc_mid=1.0, sc_k3=0.85,
    window=11, depth=9, depth_att=9, depth_pre_pub=9, depth_post_pub=9,
    c_hbm=(250, 1500), c_hbm2=(76, 900), c_w=(76, 580), c_w3=(90, 580), c_a3=(76, 500), c_a4=(76, 580), c_st=(60, 500), c_st1=(150, 1000),
    s_before=0, s3_before=2400, s_between=1500, t_flag=800, t_stat=300, k2_stop=99, e2_fill=0,
    k3_bars=[0, 1, 2, 4, 8, 12, 16, 20, 24, 28, 32, 36],
)


def generate(**kw):
    cfg = dict(DEFAULT)
    cfg.update(kw)
    g = Gen(cfg)
    return g.build(), g


if __name__ == "__main__":
    s, g = generate()
    open(f"cdna_kernels/{NAME}.s", "w").write(s)
    print("instructions", g.e.count, "nop states", g.e.nops)
    print(g.model)
```
